```python
import torch

def _softmax(x, axis=-1):
    return torch.softmax(x, dim=axis)

def _gelu(x):
    return torch.nn.functional.gelu(x, approximate='tanh')

def _silu(x):
    return torch.nn.functional.silu(x)

def _sigmoid(x):
    return torch.sigmoid(x)

def _layernorm(x, axis=-1, eps=1e-05):
    m = x.mean(dim=axis, keepdim=True)
    v = x.var(dim=axis, keepdim=True, unbiased=False)
    return (x - m) / torch.sqrt(v + eps)

def _scatter_add(tgt, idx, src, axis=0):
    return tgt.clone().index_add_(axis, idx, src)

def _segment_sum(src, seg, n):
    out = torch.zeros((n,) + src.shape[1:], dtype=src.dtype)
    return out.index_add_(0, seg, src)

def _pad(x, pw):
    flat = tuple((v for pair in reversed(pw) for v in pair))
    return torch.nn.functional.pad(x, flat)
kernel_name = 'interleave_layers__spectral_gfnet__memory_aug_recurrent_mem_tr__prompt'

def setup_inputs():

    _w = lambda a: (lambda t: t.to(torch.bfloat16) if t.is_floating_point() else t)(torch.as_tensor(a))

    def _A_setup():
        B, S, D = (1, 2048, 512)
        Df = D // 2 + 1
        return {'x': _w((lambda *s: torch.randn(*s, dtype=torch.bfloat16) * 0.05)(B, S, D)), 'w_r': _w((lambda *s: torch.randn(*s, dtype=torch.bfloat16) * 0.4)(S, Df) * 0.02), 'w_i': _w((lambda *s: torch.randn(*s, dtype=torch.bfloat16) * 0.4)(S, Df) * 0.02)}
    _A_in = _A_setup()

    def _B_setup():
        B, S, Dm = (1, 2048, 512)
        H, Dh = (32, 128)
        M, seg = (8, 32)
        seg = min(seg, S)
        S = S // seg * seg
        return {'x': _w((lambda *s: torch.randn(*s, dtype=torch.bfloat16) * 0.05)(B, S, Dm)), 'mem0': _w((lambda *s: torch.randn(*s, dtype=torch.bfloat16) * 0.2)(B, M, Dm)), 'Wq': _w((lambda *s: torch.randn(*s, dtype=torch.bfloat16) * 1.6)(Dm, H, Dh) * Dm ** (-0.5)), 'Wk': _w((lambda *s: torch.randn(*s, dtype=torch.bfloat16) * 1.6)(Dm, H, Dh) * Dm ** (-0.5)), 'Wv': _w((lambda *s: torch.randn(*s, dtype=torch.bfloat16) * 0.2)(Dm, H, Dh) * Dm ** (-0.5)), 'Wo': _w((lambda *s: torch.randn(*s, dtype=torch.bfloat16) * 0.2)(H, Dh, Dm) * (H * Dh) ** (-0.5)), 'seg_len': seg}
    _B_in = _B_setup()
    return {'A_x': _A_in['x'], 'A_w_r': _A_in['w_r'], 'A_w_i': _A_in['w_i'], 'B_x': _B_in['x'], 'B_mem0': _B_in['mem0'], 'B_Wq': _B_in['Wq'], 'B_Wk': _B_in['Wk'], 'B_Wv': _B_in['Wv'], 'B_Wo': _B_in['Wo'], 'B_seg_len': _B_in['seg_len']}

def reference(A_x, A_w_r, A_w_i, B_x, B_mem0, B_Wq, B_Wk, B_Wv, B_Wo, B_seg_len):

    def _A_ref(x, w_r, w_i):
        B, S, D = x.shape
        X = (lambda x, axes=(-2, -1): torch.fft.rfft2(x.float(), dim=axes))(x, axes=(-2, -1))
        W = w_r + 1j * w_i
        X = X * W
        y = (lambda x, s, axes=(-2, -1): torch.fft.irfft2(x, s=s, dim=axes).to(torch.bfloat16))(X, (S, D), axes=(-2, -1))
        return y

    def _B_ref(x, mem0, Wq, Wk, Wv, Wo, seg_len):
        B, S, Dm = x.shape
        H, Dh = (Wq.shape[1], Wq.shape[2])
        M = mem0.shape[1]
        scale = Dh ** (-0.5)
        n_seg = S // seg_len
        L = M + seg_len
        idx = torch.arange(L)
        mask = (idx[:, None] < M) | (idx[:, None] >= idx[None, :])
        mem = mem0
        outs = []
        for s in range(n_seg):
            xs = x[:, s * seg_len:(s + 1) * seg_len, :].clone()
            h = torch.concatenate([mem, xs], axis=1)
            q = torch.einsum('btd,dhe->bhte', h, Wq)
            k = torch.einsum('btd,dhe->bhte', h, Wk)
            v = torch.einsum('btd,dhe->bhte', h, Wv)
            scores = torch.einsum('bhqe,bhke->bhqk', q, k) * scale
            scores = torch.where(mask[None, None], scores, -1000000000.0)
            p = _softmax(scores, axis=-1)
            o = torch.einsum('bhqk,bhke->bhqe', p, v)
            o = torch.einsum('bhte,hed->btd', o, Wo)
            mem = o[:, :M, :].clone()
            outs.append(o[:, M:, :])
        return torch.concatenate(outs, axis=1)
    x = A_x
    x = x + _A_ref(_layernorm(x, axis=-1), A_w_r, A_w_i)
    x = x + _B_ref(_layernorm(x, axis=-1), B_mem0, B_Wq, B_Wk, B_Wv, B_Wo, B_seg_len)
    x = x + _A_ref(_layernorm(x, axis=-1), A_w_r, A_w_i)
    x = x + _B_ref(_layernorm(x, axis=-1), B_mem0, B_Wq, B_Wk, B_Wv, B_Wo, B_seg_len)
    return x
```

```python
import re

class Asm:
    def __init__(self):
        self.lines = []
        self._uid = 0
    def __call__(self, s):
        for l in s.split("\n"):
            l = l.strip()
            if l: self.lines.append(l)
    def label(self, base="L"):
        self._uid += 1
        return f"{base}_{self._uid}"
    def text(self):
        return "\n".join(self.lines) + "\n"

def v(i, n=1):
    return f"v{i}" if n == 1 else f"v[{i}:{i+n-1}]"
def a(i, n=1):
    return f"a{i}" if n == 1 else f"a[{i}:{i+n-1}]"
def s(i, n=1):
    return f"s{i}" if n == 1 else f"s[{i}:{i+n-1}]"
def r(i, n=1):
    return v(i, n) if i < 256 else a(i - 256, n)

_reg_re = re.compile(r"^(-|\|)?(?:abs\()?([vas])(?:(\d+)|\[(\d+):(\d+)\])\)?\|?$")
def regs_of(op):
    op = op.strip()
    if op in ("vcc",): return [("s", "vcc_lo"), ("s", "vcc_hi")]
    if op in ("vcc_lo", "vcc_hi", "m0", "exec_lo", "exec_hi"): return [("s", op)]
    if op == "exec": return [("s", "exec_lo"), ("s", "exec_hi")]
    m = _reg_re.match(op)
    if not m: return []
    k = m.group(2)
    lo = int(m.group(3) if m.group(3) is not None else m.group(4))
    hi = int(m.group(5)) if m.group(5) is not None else lo
    return [(k, i) for i in range(lo, hi + 1)]

TRANS = ("v_exp_f32", "v_log_f32", "v_rcp_f32", "v_rsq_f32", "v_sqrt_f32", "v_sin_f32", "v_cos_f32", "v_rcp_iflag_f32")

def split_ops(rest):
    ops, depth, cur = [], 0, ""
    for ch in rest:
        if ch in "[(": depth += 1
        if ch in "])": depth -= 1
        if ch == "," and depth == 0:
            ops.append(cur.strip()); cur = ""
        else: cur += ch
    if cur.strip(): ops.append(cur.strip())
    return ops

class Ins:
    def __init__(self, line):
        self.line = line
        code = line.split(";")[0].strip()
        self.is_label = code.endswith(":")
        self.is_dir = code.startswith(".")
        self.name = ""
        self.w, self.rd = [], []
        self.kind = "other"
        self.passes = 0
        self.srcC = []; self.srcAB = []
        self.dpp = False; self.states = 1
        self.target = None
        if self.is_label or self.is_dir or not code:
            self.states = 0
            if self.is_label: self.lab = code[:-1]
            return
        p = code.split(None, 1)
        n = self.name = p[0]
        rest = p[1] if len(p) > 1 else ""
        ops = split_ops(rest)
        mods = ""
        if ops:
            q = ops[-1].split(None, 1)
            if len(q) > 1 and not ops[-1].startswith("hwreg"):
                ops[-1] = q[0]; mods = q[1]
        self.ops, self.mods = ops, mods
        R = [regs_of(o) for o in ops]
        flat = lambda L: [x for y in L for x in y]
        if n == "s_nop":
            self.states = int(ops[0], 0) + 1; self.kind = "salu"
        elif n.startswith("v_mfma") or n.startswith("v_smfmac"):
            self.kind = "mfma"
            self.passes = 8 if "32x32" in n else (2 if "4x4x4" in n else 4)
            assert "f32_32x32x2" not in n and "16x16x4_f32" not in n
            self.w = R[0]
            if n.startswith("v_smfmac"):
                self.srcC = R[0]; self.srcAB = R[1] + R[2] + R[3]
            else:
                self.srcC = R[3]; self.srcAB = R[1] + R[2]
            self.rd = self.srcC + self.srcAB
        elif n.startswith("v_"):
            self.kind = "valu"
            self.dpp = "_dpp" in n or "row_" in mods or "quad_perm" in mods
            base = n.replace("_e32", "").replace("_e64", "").replace("_dpp", "")
            self.base = base
            if base.startswith("v_cmp"):
                self.w = R[0]; self.rd = flat(R[1:])
                assert not base.startswith("v_cmpx")
            elif base.startswith("v_permlane") and "swap" in base:
                self.w = R[0] + R[1]; self.rd = R[0] + R[1]
            elif base in ("v_add_co_u32", "v_sub_co_u32", "v_addc_co_u32", "v_subb_co_u32", "v_mad_u64_u32"):
                self.w = R[0] + R[1]; self.rd = flat(R[2:])
            else:
                self.w = R[0]; self.rd = flat(R[1:])
                if base in ("v_fmac_f32", "v_dot2c_f32_bf16", "v_pk_fmac_f16", "v_writelane_b32") or self.dpp:
                    self.rd = self.rd + R[0]
                if base == "v_cndmask_b32" and len(ops) == 3:
                    self.rd += regs_of("vcc")
        elif n.startswith("ds_"):
            self.kind = "ds"
            if n.startswith("ds_read") or n.startswith("ds_bpermute") or n.startswith("ds_permute") or n.startswith("ds_swizzle") or "_rtn" in n:
                self.w = R[0]; self.rd = flat(R[1:])
            else:
                self.rd = flat(R)
        elif n.startswith("global_") or n.startswith("buffer_") or n.startswith("flat_"):
            self.kind = "vmem"
            self.lds = "_lds_" in n or " lds" in (" " + mods)
            if n in ("buffer_inv", "buffer_wbl2"):
                pass
            elif self.lds:
                self.rd = flat(R) + [("s", "m0")]
            elif "_load" in n:
                self.w = R[0]; self.rd = flat(R[1:])
            elif "_atomic" in n and "sc0" in mods and n.startswith("global_"):
                self.w = R[0]; self.rd = flat(R[1:])
            else:
                self.rd = flat(R)
                if "store_dwordx4" in n or "store_dwordx3" in n:
                    self.widedata = R[1] if n.startswith("global_") or n.startswith("flat_") else R[0]
        elif n.startswith("s_"):
            self.kind = "salu"
            if n.startswith("s_cbranch") or n == "s_branch":
                self.target = ops[0]
            elif n.startswith("s_cmp") or n.startswith("s_bitcmp") or n in ("s_waitcnt", "s_barrier", "s_endpgm", "s_sleep", "s_setprio"):
                self.rd = flat(R)
            elif n.startswith("s_load") or n.startswith("s_memtime") or n.startswith("s_memreal") or n.startswith("s_atomic"):
                self.kind = "smem"; self.w = R[0]; self.rd = flat(R[1:])
            else:
                self.w = R[0] if R else []; self.rd = flat(R[1:])
                if "saveexec" in n: self.w = self.w + regs_of("exec")
        else:
            raise ValueError("unknown instr: " + line)

BIG = 99
def need(prod, cons, reg):
    t = prod[0]
    n = 0
    rd = reg in cons.rd; wr = reg in cons.w
    if t == "valu":
        if cons.kind == "mfma" and rd: n = 2
        if cons.kind == "valu" and rd:
            if cons.dpp: n = max(n, 2)
            if cons.base.startswith("v_permlane"): n = max(n, 2)
            if cons.base in ("v_readlane_b32", "v_readfirstlane_b32"): n = max(n, 1)
            if prod[1] == "trans" and cons.base not in TRANS: n = max(n, 1)
            if prod[1] == "opsel": n = max(n, 1)
        if prod[1] == "dot" :
            if (rd or wr) and not (cons.kind == "valu" and cons.base == prod[2] and reg not in [x for o in cons.ops[1:3] for x in regs_of(o)]):
                n = max(n, 3)
    elif t == "valu_s":
        if cons.kind == "valu" and rd:
            n = 4 if cons.base in ("v_readlane_b32", "v_writelane_b32", "v_div_fmas_f32") else 2
        if cons.kind == "vmem" and rd: n = 5
    elif t == "mfma":
        p = prod[1]
        full = {2: 5, 4: 8, 8: 12, 16: 20}[p]
        if cons.kind == "mfma":
            if reg in cons.srcAB: n = full
            elif reg in cons.srcC:
                if cons.srcC == prod[2] and cons.passes == p: n = 2 if p == 2 else 0
                else: n = p + 2
            elif wr: n = p + 2
        elif cons.kind in ("valu", "vmem", "ds") and (rd or wr): n = full
    elif t == "mfmaC":
        if cons.kind == "valu" and wr: n = prod[1] - 1
    elif t == "wide":
        if wr: n = 2 if cons.kind == "valu" else 1
    elif t == "m0":
        if cons.kind == "vmem" and getattr(cons, "lds", False): n = 1
        if cons.kind == "ds" and "addtid" in cons.name: n = 1
    return n

def events(ins):
    ev = []
    if ins.kind == "valu":
        for g in ins.w:
            if g[0] == "s": ev.append((g, ("valu_s",)))
            else:
                sub = "trans" if ins.base in TRANS else ("dot" if ins.base.startswith("v_dot") else ("opsel" if ("op_sel" in ins.mods and not ins.base.startswith("v_pk")) or "sdwa" in ins.name else ""))
                ev.append((g, ("valu", sub, ins.base)))
    elif ins.kind == "mfma":
        for g in ins.w: ev.append((g, ("mfma", ins.passes, tuple(ins.w))))
        for g in ins.srcC:
            if g not in ins.w: ev.append((g, ("mfmaC", ins.passes)))
    elif ins.kind == "vmem" and hasattr(ins, "widedata"):
        for g in ins.widedata: ev.append((g, ("wide",)))
    elif ins.kind == "salu":
        for g in ins.w:
            if g == ("s", "m0"): ev.append((g, ("m0",)))
    return ev

def fix_hazards(text, verbose=False, pipe=True):
    lines = [l for l in text.split("\n")]
    total = 0
    for _round in range(50):
        ins = [Ins(l.strip()) for l in lines]
        for i in ins:
            if i.kind == "mfma": i.srcC = list(i.srcC)
        lab = {x.lab: k for k, x in enumerate(ins) if x.is_label}
        states = [None] * (len(ins) + 1)
        states[0] = {}
        work = [0]
        for k, x in enumerate(ins):
            if x.is_label and states[k] is None:
                states[k] = {}; work.append(k)
        needs = {}
        def merge(k, st):
            if states[k] is None:
                states[k] = dict(st); return True
            ch = False
            for key, d in st.items():
                if d < states[k].get(key, BIG):
                    states[k][key] = d; ch = True
            return ch
        while work:
            k = work.pop()
            while k < len(ins):
                x = ins[k]; st = states[k]
                if x.is_label:
                    st = {key: d for key, d in st.items() if key[0] != "pipe"}
                if x.states and x.kind == "mfma" and pipe:
                    pk = [(key, d) for key, d in st.items() if key[0] == "pipe"]
                    if len(pk) == 1:
                        (key, e), = pk
                        bump = key[1][1] - 1 - e
                        if bump > 0:
                            st = {k2: (d + bump if d >= e else d) for k2, d in st.items()}
                if x.states:
                    touched = set(x.rd) | set(x.w)
                    worst = 0
                    for (g, prod), d in st.items():
                        if g in touched:
                            p2 = prod
                            if prod[0] == "mfma": p2 = ("mfma", prod[1], list(prod[2]))
                            nd = need(p2, x, g)
                            if nd > d: worst = max(worst, nd - d)
                    if worst: needs[k] = max(needs.get(k, 0), worst)
                    adv = x.states + needs.get(k, 0)
                    new = {key: d + adv for key, d in st.items() if d + adv < 24}
                    for g, prod in events(x):
                        new[(g, prod)] = 0
                    if x.kind == "mfma":
                        new = {key: d for key, d in new.items() if key[0] != "pipe"}
                        new[("pipe", ("pipe", x.passes))] = 0
                else:
                    new = st
                if x.target is not None and x.target in lab:
                    if merge(lab[x.target], new): work.append(lab[x.target])
                if x.name in ("s_branch", "s_endpgm", "s_setpc_b64"): break
                if not merge(k + 1, new): break
                k += 1
        if not needs: break
        out = []
        for k, l in enumerate(lines):
            if k in needs:
                n = needs[k]; total += n
                if verbose: print(f"hazard: +{n} before: {l.strip()}")
                while n > 0:
                    m = min(n, 16); out.append(f"s_nop {m-1}"); n -= m
            out.append(l)
        lines = out
    return "\n".join(lines)

class Ctr:
    def __init__(self, A, name, maxn):
        self.A, self.name, self.maxn = A, name, maxn
        self.q = []
    def issue(self, text, tag=None):
        for l in text.strip().split("\n"):
            self.A(l); self.q.append(tag)
    def wait(self, *tags):
        idx = [i for i, t in enumerate(self.q) if t in tags]
        if not idx: return
        n = len(self.q) - 1 - max(idx)
        if n > self.maxn: n = self.maxn
        self.A(f"s_waitcnt {self.name}({n})")
        self.q = self.q[len(self.q) - n:] if n else []
    def drain(self):
        self.A(f"s_waitcnt {self.name}(0)"); self.q = []
    def assume(self, tags):
        self.q = list(tags)
```

```python
import struct
from asmlib import *
def fbits(x): return struct.unpack("<I", struct.pack("<f", x))[0]
SENT = 0xFF81FF81
WS_EL   = 0x0000
WS_GB   = 0x1000
WS_KVF  = 0x2000
WS_Y1F  = 0x5000
WS_Y2F  = 0x7000
WS_FLAG_END = 0x10000
WS_P    = 0x40000
WS_M    = 0x80000
WS_CT   = 0x90000
WS_WB   = 0xA0000
WS_MH   = 0x100000
WS_FF   = 0x200000
WS_FI   = 0x280000
WS_WT   = 0x400000
WS_Y1   = 0x600000
WS_Y2   = 0xA00000
WS_X1   = 0xE00000
WS_X2   = 0x1200000
WS_PW   = 0x1400000
WS_Q    = 0x2800000
WS_KV   = 0x4000000
KV_LAYER = 0x2400000
WS_END  = WS_KV + 2*KV_LAYER

S_X, S_OUT, S_WS = 4, 6, 8
S_WG, S_W, S_H, S_G, S_L = 2, 10, 11, 12, 13
S_T0, S_T1, S_T2, S_T3 = 14, 15, 16, 17

def sbase(A, dst, src, const=0, add=None):
    if add is not None:
        A(f"s_add_u32 s{dst}, s{src}, s{add}\ns_addc_u32 s{dst+1}, s{src+1}, 0")
        if const: A(f"s_add_u32 s{dst}, s{dst}, {const:#x}\ns_addc_u32 s{dst+1}, s{dst+1}, 0")
    else:
        A(f"s_add_u32 s{dst}, s{src}, {const:#x}\ns_addc_u32 s{dst+1}, s{src+1}, 0")
def cvt(A, d, x, y, nx=False, ny=False):
    A(f"v_cvt_pk_bf16_f32 {v(d)}, {'-' if nx else ''}{v(x)}, {('-' if ny else '') + v(y) if y is not None else 0}")
def mf32(A, d, a_, b_, c=None):
    A(f"v_mfma_f32_16x16x32_bf16 {v(d,4)}, {v(a_,4)}, {v(b_,4)}, {v(c,4) if c is not None else 0}")
def mf16(A, d, a_, b_, c=None):
    A(f"v_mfma_f32_16x16x16_bf16 {v(d,4)}, {v(a_,2)}, {v(b_,2)}, {v(c,4) if c is not None else 0}")
def phi(g, j): return 16*(j >> 2) + 4*g + (j & 3)

S_EP = 18
S_TO = 19
TIMEOUT = 400000
LDS_WV = 32768
C_SCALE = float(128 ** -0.5 * 1.4426950408889634)
A_, B_ = 0, 1
SEQ = [("qk",0,0,A_),("qk",0,0,B_),("qk",1,0,A_),("qk",1,0,B_),("v",0,0),("v",0,1),("v",1,0),("v",1,1),
       ("qk",0,1,A_),("qk",0,1,B_),("qk",1,1,A_),("qk",1,1,B_)]
for _rho in range(2, 6): SEQ += [("qk",_rho,0,A_),("qk",_rho,0,B_),("qk",_rho,1,A_),("qk",_rho,1,B_)]
SEQ += [("qk",6,0,A_),("qk",6,1,A_),("qk",7,0,A_),("qk",7,1,A_),("qk",6,0,B_),("qk",6,1,B_),("qk",7,0,B_),("qk",7,1,B_)]
LDS_SET = SEQ[:6] + [SEQ[19], SEQ[23], SEQ[27], SEQ[31]] + [("v",2,0), ("v",2,1), ("v",3,0), ("o",0,0), ("o",0,1), ("o",0,2)]
CHUNKS = [("qk",2),("qk",6),("v",2),("v",3),("o",1),("o",2),("o",3),("qk",3),("qk",4),("qk",5),("qk",7),("qk",0),("qk",1),("v",0),("v",1),("o",0)]
def chunk_frags(c):
    if c[0] == "qk": return [("qk", c[1], rot, tau) for rot in range(2) for tau in range(2)]
    if c[0] == "v": return [("v", 2*c[1]+p, tau) for p in range(2) for tau in range(2)]
    return [("o", c[1], j) for j in range(4)]
LDS_FRAGS = [f for c in CHUNKS for f in chunk_frags(c) if f in LDS_SET]
_all = [f for c in CHUNKS for f in chunk_frags(c) if f not in LDS_SET]
REG_FRAGS = [f for f in _all if f[0] == "o"] + [f for f in _all if f[0] != "o"]
assert len(LDS_FRAGS) == 16 and len(REG_FRAGS) == 48
def wres(f): return 128 + 8*REG_FRAGS.index(f)
def wslot(f): return 2048*LDS_FRAGS.index(f)
def smf(A, d, x, wr, idx): A(f"v_smfmac_f32_16x16x64_bf16 {v(d,4)}, {v(x,4)}, {r(wr,8)}, {v(idx)}")
def spin_guard(A): A(f"s_add_u32 s{S_TO}, s{S_TO}, 1\ns_cmp_gt_u32 s{S_TO}, {TIMEOUT}\ns_cbranch_scc1 KB_fail")
```

```python
from common import *

def lane_consts(A, lane, n, g):
    A(f"v_and_b32 {v(n)}, 15, {v(lane)}\nv_lshrrev_b32 {v(g)}, 4, {v(lane)}")

class RowDFT:
    FA = 8
    XB = 24
    D = 56
    ST = 64
    AX, AWR, ASW, ARD, ASR, AOUT, ONE = 1, 2, 3, 4, 5, 6, 7
    R = 68
    LDS_D, LDS_S = 0, 8192
    @classmethod
    def setup(c, A):
        n, g, t = 68, 69, 70
        lane_consts(A, 0, n, g)
        A(f"""
        v_lshlrev_b32 {v(c.AX)}, 10, {v(n)}
        v_lshl_add_u32 {v(c.AX)}, {v(g)}, 4, {v(c.AX)}
        s_lshl_b32 s{S_T0}, s{S_W}, 8
        v_add_u32 {v(c.AX)}, s{S_T0}, {v(c.AX)}
        v_lshlrev_b32 {v(t)}, 4, v0
        s_lshl_b32 s{S_T0}, s{S_W}, 11
        v_add_u32 {v(c.AWR)}, s{S_T0}, {v(t)}
        s_lshl_b32 s{S_T0}, s{S_W}, 2
        v_add_u32 {v(c.ASW)}, s{S_T0}, {v(t)}
        v_and_b32 {v(t)}, 1, {v(g)}
        v_lshlrev_b32 {v(c.ARD)}, 10, {v(t)}
        v_lshl_add_u32 {v(c.ARD)}, {v(n)}, 4, {v(c.ARD)}
        s_lshl_b32 s{S_T0}, s{S_W}, 8
        v_add_u32 {v(c.ARD)}, s{S_T0}, {v(c.ARD)}
        v_lshlrev_b32 {v(c.ASR)}, 9, {v(t)}
        v_lshl_add_u32 {v(c.ASR)}, {v(n)}, 4, {v(c.ASR)}
        v_lshrrev_b32 {v(t)}, 5, v0
        v_lshl_add_u32 {v(c.ARD)}, {v(t)}, 3, {v(c.ARD)}
        v_lshlrev_b32 {v(c.AOUT)}, 13, {v(t)}
        v_and_b32 {v(t)}, 31, v0
        v_lshl_add_u32 {v(c.AOUT)}, {v(t)}, 2, {v(c.AOUT)}
        s_lshl_b32 s{S_T0}, s{S_W}, 14
        v_add_u32 {v(c.AOUT)}, s{S_T0}, {v(c.AOUT)}
        v_mov_b32 {v(c.ONE)}, 0x3f803f80
        """)
    @classmethod
    def load(c, A, sx, sx2, fl):
        for j in range(4):
            for t in range(2):
                A(f"global_load_dwordx4 {v(c.XB+16*t+4*j,4)}, {v(c.AX)}, s[{(sx, sx2)[t]}:{(sx, sx2)[t]+1}] offset:{64*j} {fl}")
    @classmethod
    def compute(c, A, nyoung=0):
        for q in range(4): A(f"v_mov_b32 {v(c.ST+q)}, 0")
        for j in range(4):
            for t in range(2):
                A(f"s_waitcnt vmcnt({nyoung + 7 - 2*j - t})")
                x = c.XB + 16*t + 4*j
                mf32(A, c.D+4*t, c.FA+4*j, x, c.D+4*t if j else None)
                for q in range(4):
                    A(f"v_dot2c_f32_bf16 {v(c.ST+t)}, {v(x+q)}, {v(c.ONE)}\nv_dot2c_f32_bf16 {v(c.ST+2+t)}, {v(x+q)}, {v(x+q)}")
    @classmethod
    def finish(c, A, sy, fl):
        S, R = c.ST, c.R
        A(f"""
        ds_write_b128 {v(c.AWR)}, {v(c.D,4)} offset:{c.LDS_D}
        ds_write_b128 {v(c.AWR)}, {v(c.D+4,4)} offset:{c.LDS_D+1024}
        v_permlane32_swap_b32 {v(S)}, {v(S+1)}
        v_permlane32_swap_b32 {v(S+2)}, {v(S+3)}
        v_add_f32 {v(S)}, {v(S)}, {v(S+1)}
        v_add_f32 {v(S+2)}, {v(S+2)}, {v(S+3)}
        v_permlane16_swap_b32 {v(S)}, {v(S+2)}
        v_add_f32 {v(S)}, {v(S)}, {v(S+2)}
        ds_write_b32 {v(c.ASW)}, {v(S)} offset:{c.LDS_S}
        s_waitcnt lgkmcnt(0)
        s_barrier
        ds_read_b128 {v(R+8,4)}, {v(c.ASR)} offset:{c.LDS_S}
        ds_read_b128 {v(R+12,4)}, {v(c.ASR)} offset:{c.LDS_S+256}
        """)
        for k in range(4):
            A(f"ds_read_b64 {v(R+2*k,2)}, {v(c.ARD)} offset:{c.LDS_D + 2048*k}")
        A(f"""
        s_waitcnt lgkmcnt(4)
        v_pk_add_f32 {v(R+8,2)}, {v(R+8,2)}, {v(R+10,2)}
        v_pk_add_f32 {v(R+12,2)}, {v(R+12,2)}, {v(R+14,2)}
        v_add_f32 {v(R+8)}, {v(R+8)}, {v(R+9)}
        v_add_f32 {v(R+12)}, {v(R+12)}, {v(R+13)}
        v_mul_f32 {v(R+8)}, {fbits(1/512):#x}, {v(R+8)}
        v_mul_f32 {v(R+12)}, {fbits(1/512):#x}, {v(R+12)}
        v_fma_f32 {v(R+12)}, -{v(R+8)}, {v(R+8)}, {v(R+12)}
        v_max_f32 {v(R+12)}, 0, {v(R+12)}
        v_add_f32 {v(R+12)}, {fbits(1e-5):#x}, {v(R+12)}
        v_rsq_f32 {v(R+12)}, {v(R+12)}
        s_waitcnt lgkmcnt(0)
        s_barrier
        v_pk_add_f32 {v(R,2)}, {v(R,2)}, {v(R+2,2)}
        v_pk_add_f32 {v(R+4,2)}, {v(R+4,2)}, {v(R+6,2)}
        v_pk_add_f32 {v(R,2)}, {v(R,2)}, {v(R+4,2)}
        v_pk_mul_f32 {v(R,2)}, {v(R,2)}, {v(R+12,2)} op_sel_hi:[1,0]
        v_cvt_pk_bf16_f32 {v(R)}, {v(R)}, {v(R+1)}
        global_store_dword {v(c.AOUT)}, {v(R)}, s[{sy}:{sy+1}] {fl}
        """)

def column(A, sf, sy1, sy2, wait_inputs, lab):
    L16, AT0, AT1, AW2a, AW2b, AFW, ADM = 1, 2, 3, 4, 5, 6, 7
    CS64, CS32, TW, PQ, FR, WF, WB = 8, 24, 40, 56, 88, 104, 112
    T = 120
    n, g = T, T+1
    lane_consts(A, 0, n, g)
    A(f"v_lshlrev_b32 {v(L16)}, 4, v0")
    A(f"s_lshl_b32 s{S_T0}, s{S_W}, 12")
    sbase(A, 20, S_WS, WS_CT, S_T0)
    for q in range(4): A(f"global_load_dwordx4 {v(CS64+4*q,4)}, {v(L16)}, s[20:21] offset:{1024*q}")
    sbase(A, 20, 20, 0x8000)
    for q in range(4): A(f"global_load_dwordx4 {v(TW+4*q,4)}, {v(L16)}, s[20:21] offset:{1024*q}")
    sbase(A, 20, S_WS, WS_CT + 0x4000)
    for q in range(4): A(f"global_load_dwordx4 {v(CS32+4*q,4)}, {v(L16)}, s[20:21] offset:{1024*q}")
    A(f"s_lshl_b32 s{S_T0}, s{sf}, 13\ns_lshl_b32 s{S_T1}, s{S_W}, 11\ns_add_u32 s{S_T0}, s{S_T0}, s{S_T1}")
    sbase(A, 20, S_WS, WS_WT, S_T0)
    for q in range(2): A(f"global_load_dwordx4 {v(WF+4*q,4)}, {v(L16)}, s[20:21] offset:{1024*q}")
    sbase(A, 20, S_WS, WS_WB, S_T1)
    for q in range(2): A(f"global_load_dwordx4 {v(WB+4*q,4)}, {v(L16)}, s[20:21] offset:{1024*q}")
    sbase(A, sy1, sy1, 0, S_T0); sbase(A, sy2, sy2, 0, S_T0)
    A(f"""
    v_and_b32 {v(T+2)}, 16, v0
    v_lshlrev_b32 {v(T+2)}, 2, {v(T+2)}
    v_xor_b32 {v(ADM)}, {v(T+2)}, {v(L16)}
    v_lshrrev_b32 {v(T+2)}, 2, {v(n)}
    v_lshl_add_u32 {v(T+3)}, {v(g)}, 3, {v(T+2)}
    v_lshlrev_b32 {v(T+3)}, 7, {v(T+3)}
    v_lshrrev_b32 {v(T+2)}, 1, {v(T+2)}
    v_lshl_add_u32 {v(T+3)}, {v(T+2)}, 6, {v(T+3)}
    v_and_b32 {v(T+2)}, 3, {v(n)}
    v_lshl_add_u32 {v(AT0)}, {v(T+2)}, 4, {v(T+3)}
    v_xor_b32 {v(AT1)}, 64, {v(AT0)}
    v_lshlrev_b32 {v(AFW)}, 7, {v(n)}
    v_lshl_add_u32 {v(AFW)}, {v(g)}, 4, {v(AFW)}
    v_add_u32 {v(AFW)}, s{S_T1}, {v(AFW)}
    v_and_b32 {v(T+2)}, 2, {v(n)}
    v_lshlrev_b32 {v(T+2)}, 5, {v(T+2)}
    v_xor_b32 {v(AW2a)}, {v(T+2)}, {v(AFW)}
    v_xor_b32 {v(AW2b)}, 64, {v(AW2a)}
    s_mov_b32 m0, s{S_T1}
    """)
    wait_inputs()
    A(f"global_load_lds_dwordx4 {v(ADM)}, s[{sy1}:{sy1+1}] sc1\nglobal_load_lds_dwordx4 {v(ADM)}, s[{sy1}:{sy1+1}] offset:1024 sc1")
    A("s_waitcnt vmcnt(0)\ns_barrier")
    def stage64(img):
        DS = Ctr(A, "lgkmcnt", 15)
        seq = [(t, ks) for t in range(4) for ks in range(2)]
        def rd(i):
            t, ks = seq[i]
            for u in range(2):
                DS.issue(f"ds_read_b64_tr_b16 {v(FR+4*(i & 3)+2*u,2)}, {v(AT1 if t >> 1 else AT0)} offset:{img + ks*4096 + u*512 + 8*(t & 1)}", i)
        for i in range(4): rd(i)
        for i, (t, ks) in enumerate(seq):
            DS.wait(i)
            mf32(A, PQ+4*t, FR+4*(i & 3), CS64+4*ks, PQ+4*t if ks else None)
            mf32(A, PQ+16+4*t, FR+4*(i & 3), CS64+8+4*ks, PQ+16+4*t if ks else None)
            if i + 4 < 8: rd(i+4)
    Pr = lambda j: PQ + 2*j; Pi = lambda j: PQ + 2*j + 1; Qr = lambda j: PQ + 16 + 2*j; Qi = lambda j: PQ + 17 + 2*j
    def twiddle(re, im, ore, oim):
        for j in range(8):
            tc, ts = TW + j, TW + 8 + j
            A(f"v_mul_f32 {v(T)}, {v(re(j))}, {v(tc)}\nv_mul_f32 {v(T+1)}, {v(im(j))}, {v(tc)}")
            A(f"v_fma_f32 {v(T+1)}, -{v(re(j))}, {v(ts)}, {v(T+1)}")
            A(f"v_fma_f32 {v(ore(j))}, {v(im(j))}, {v(ts)}, {v(T)}\nv_mov_b32 {v(oim(j))}, {v(T+1)}")
    def stage32(re, im, dre, dim, conj=False):
        for q in range(4):
            cvt(A, FR+q, re(2*q), re(2*q+1))
            cvt(A, FR+4+q, im(2*q), im(2*q+1), conj, conj)
            cvt(A, FR+8+q, re(2*q), re(2*q+1), True, True)
        for Tt in range(2):
            mf32(A, dre+4*Tt, CS32+4*Tt, FR); mf32(A, dim+4*Tt, CS32+4*Tt, FR+4)
        for Tt in range(2):
            mf32(A, dre+4*Tt, CS32+8+4*Tt, FR+4, dre+4*Tt); mf32(A, dim+4*Tt, CS32+8+4*Tt, FR+8, dim+4*Tt)
    def cmul(xr, xi, wreg, acc):
        for j in range(8):
            A(f"v_lshlrev_b32 {v(T)}, 16, {v(wreg+j)}\nv_and_b32 {v(T+1)}, 0xffff0000, {v(wreg+j)}")
            if acc:
                A(f"v_fmac_f32 {v(PQ+j)}, {v(xr+j)}, {v(T)}\nv_fmac_f32 {v(PQ+8+j)}, {v(xi+j)}, {v(T)}")
                A(f"v_fma_f32 {v(PQ+j)}, -{v(xi+j)}, {v(T+1)}, {v(PQ+j)}\nv_fmac_f32 {v(PQ+8+j)}, {v(xr+j)}, {v(T+1)}")
            else:
                A(f"v_mul_f32 {v(T+2)}, {v(xr+j)}, {v(T)}\nv_mul_f32 {v(T+3)}, {v(xi+j)}, {v(T)}")
                A(f"v_fmac_f32 {v(T+3)}, {v(xr+j)}, {v(T+1)}")
                A(f"v_fma_f32 {v(PQ+j)}, -{v(xi+j)}, {v(T+1)}, {v(T+2)}\nv_mov_b32 {v(PQ+8+j)}, {v(T+3)}")
    stage64(0)
    for j in range(8):
        A(f"v_sub_f32 {v(T)}, {v(Pr(j))}, {v(Qi(j))}\nv_add_f32 {v(Pr(j))}, {v(Pr(j))}, {v(Qi(j))}\nv_mov_b32 {v(Qi(j))}, {v(T)}")
        A(f"v_add_f32 {v(T+1)}, {v(Pi(j))}, {v(Qr(j))}\nv_sub_f32 {v(Pi(j))}, {v(Pi(j))}, {v(Qr(j))}\nv_sub_f32 {v(Qr(j))}, 0, {v(T+1)}")
    twiddle(Pr, Pi, Pr, Pi)
    stage32(Pr, Pi, PQ, PQ+8)
    cmul(PQ, PQ+8, WF, False)
    A(f"s_cmp_eq_u32 s{sf}, 0\ns_cbranch_scc0 {lab}_nz")
    twiddle(Qi, Qr, Qi, Qr)
    stage32(Qi, Qr, PQ+16, PQ+24)
    cmul(PQ+16, PQ+24, WB, True)
    A(f"{lab}_nz:")
    yr = lambda j: PQ + j; yi = lambda j: PQ + 8 + j
    stage32(yr, yi, PQ+16, PQ+24, conj=True)
    ur = lambda j: PQ + 16 + j; ui = lambda j: PQ + 24 + j
    twiddle(ur, ui, ur, ui)
    for j in range(8): cvt(A, PQ+j, ur(j), ui(j))
    A(f"ds_write_b128 {v(AW2a)}, {v(PQ,4)} offset:8192\nds_write_b128 {v(AW2b)}, {v(PQ+4,4)} offset:8192\ns_waitcnt lgkmcnt(0)\ns_barrier")
    stage64(8192)
    for j in range(8):
        A(f"v_add_f32 {v(Pr(j))}, {v(Pr(j))}, {v(Qi(j))}\nv_sub_f32 {v(Pi(j))}, {v(Qr(j))}, {v(Pi(j))}")
        cvt(A, FR+j, Pr(j), Pi(j))
    A(f"""
    ds_write_b128 {v(AFW)}, {v(FR,4)} offset:16384
    ds_write_b128 {v(AFW)}, {v(FR+4,4)} offset:{16384+64}
    v_add_u32 {v(T)}, s{S_T1}, {v(L16)}
    ds_read_b128 {v(FR+8,4)}, {v(T)} offset:16384
    ds_read_b128 {v(FR+12,4)}, {v(T)} offset:{16384+1024}
    s_waitcnt lgkmcnt(1)
    global_store_dwordx4 {v(L16)}, {v(FR+8,4)}, s[{sy2}:{sy2+1}] sc1
    s_waitcnt lgkmcnt(0)
    global_store_dwordx4 {v(L16)}, {v(FR+12,4)}, s[{sy2}:{sy2+1}] offset:1024 sc1
    """)
```

```python
from common import *
from fft import *

def prologue(A, lab_end):
    A(f"""
    s_cmp_ge_u32 s2, 256
    s_cbranch_scc1 {lab_end}
    s_load_dwordx2 s[{S_X}:{S_X+1}], s[0:1], 0
    s_load_dwordx2 s[{S_OUT}:{S_OUT+1}], s[0:1], 80
    s_load_dwordx2 s[{S_WS}:{S_WS+1}], s[0:1], 96
    v_lshrrev_b32 v1, 6, v0
    v_readfirstlane_b32 s{S_W}, v1
    """)

def cosidx(A, dst, idx, bits, tmp=None):
    A(f"v_and_b32 {v(dst)}, {(1 << bits) - 1}, {v(idx)}\nv_cvt_f32_u32 {v(dst)}, {v(dst)}\nv_mul_f32 {v(dst)}, {fbits(1.0/(1 << bits)):#x}, {v(dst)}\nv_cos_f32 {v(dst)}, {v(dst)}")

def gen_k0():
    A = Asm()
    prologue(A, "K0_end")
    TID = 100
    A(f"""
    s_load_dwordx4 s[24:27], s[0:1], 8       ; w_r, w_i
    s_load_dwordx2 s[28:29], s[0:1], 32      ; mem0
    v_mov_b32 {v(TID)}, v0
    v_and_b32 v0, 63, v0
    s_and_b32 s{S_H}, s2, 31
    s_lshr_b32 s{S_G}, s2, 5
    s_waitcnt lgkmcnt(0)
    """)
    R = RowDFT
    R.setup(A)
    A(f"s_lshl_b32 s{S_T0}, s{S_G}, 18")
    sbase(A, 30, S_X, 0, S_T0); sbase(A, 32, 30, 16384)
    R.load(A, 30, 32, "")
    fl, kk, ad, ao = 101, 102, 103, 104
    WR = 108
    A(f"""
    s_lshr_b32 s{S_T0}, s2, 3
    s_lshr_b32 s{S_T1}, s{S_T0}, 3          ; w'
    s_and_b32 s{S_T2}, s{S_T0}, 7           ; half*4+g
    s_and_b32 s{S_T3}, s2, 7
    v_and_b32 {v(fl)}, 31, {v(TID)}
    s_lshl_b32 s18, s{S_T3}, 5
    v_add_u32 {v(fl)}, s18, {v(fl)}          ; f
    v_lshrrev_b32 {v(kk)}, 5, {v(TID)}       ; k1l in 0..7 (+8)
    s_lshl_b32 s18, s{S_T1}, 4
    s_lshl_b32 s19, s{S_T2}, 8               ; 64*4*(half*4+g)
    s_add_u32 s18, s18, s19
    v_add_u32 {v(ad)}, s18, {v(kk)}
    v_mul_u32_u24 {v(ad)}, 514, {v(ad)}
    v_lshl_add_u32 {v(ad)}, {v(fl)}, 1, {v(ad)}
    """)
    for p in range(2):
        for i in range(4):
            off = (8*p + 64*i) * 514
            A(f"v_add_u32 {v(ao)}, {off}, {v(ad)}")
            A(f"global_load_ushort {v(WR+4*p+i)}, {v(ao)}, s[24:25]\nglobal_load_ushort {v(WR+8+4*p+i)}, {v(ao)}, s[26:27]")
    n, g = 84, 85
    lane_consts(A, 0, n, g)
    fe, ph, sc, d0, t0, t1 = 86, 87, 88, 89, 90, 91
    A(f"""
    v_lshrrev_b32 {v(fe)}, 1, {v(n)}
    s_lshl_b32 s18, s{S_H}, 3
    v_add_u32 {v(fe)}, s18, {v(fe)}
    v_and_b32 {v(t0)}, 1, {v(n)}
    v_lshlrev_b32 {v(ph)}, 7, {v(t0)}
    v_cvt_f32_u32 {v(t1)}, {v(t0)}
    v_cmp_eq_u32 vcc, 0, {v(fe)}
    v_cndmask_b32 {v(sc)}, 1.0, {v(t1)}, vcc
    v_cndmask_b32 {v(ph)}, {v(ph)}, 0, vcc
    v_mov_b32 {v(t0)}, 256
    v_cndmask_b32 {v(fe)}, {v(fe)}, {v(t0)}, vcc
    s_lshl_b32 s18, s{S_W}, 7
    v_lshl_add_u32 {v(d0)}, {v(g)}, 3, s18
    v_mad_u32_u24 {v(d0)}, {v(d0)}, {v(fe)}, {v(ph)}
    """)
    for j in range(4):
        for q in range(4):
            for e in range(2):
                k = 32*j + 2*q + e
                A(f"v_mad_u32_u24 {v(t0+e)}, {v(fe)}, {k if k <= 64 else 's19'}, {v(d0)}" if k <= 64 else f"s_mov_b32 s19, {k}\nv_mad_u32_u24 {v(t0+e)}, {v(fe)}, s19, {v(d0)}")
                cosidx(A, t0+e, t0+e, 9)
                A(f"v_mul_f32 {v(t0+e)}, {v(t0+e)}, {v(sc)}")
            cvt(A, R.FA+4*j+q, t0, t1)
    L16 = 92
    A(f"v_lshlrev_b32 {v(L16)}, 4, v0\ns_lshl_b32 s18, s{S_H}, 14\ns_lshl_b32 s19, s{S_W}, 12\ns_add_u32 s18, s18, s19")
    A("s_waitcnt vmcnt(0)")
    for q in range(8): A(f"v_lshl_or_b32 {v(WR+q)}, {v(WR+8+q)}, 16, {v(WR+q)}")
    A(f"""
    v_lshlrev_b32 {v(ao)}, 13, {v(fl)}
    v_lshl_add_u32 {v(ao)}, {v(kk)}, 4, {v(ao)}
    s_lshl_b32 s19, s{S_T0}, 8
    v_add_u32 {v(ao)}, s19, {v(ao)}
    """)
    sbase(A, 20, S_WS, WS_WT)
    A(f"""
    v_cmp_ne_u32 vcc, 0, {v(fl)}
    s_and_saveexec_b64 s[22:23], vcc
    global_store_dwordx4 {v(ao)}, {v(WR,4)}, s[20:21]
    global_store_dwordx4 {v(ao)}, {v(WR+4,4)}, s[20:21] offset:128
    s_mov_b64 exec, s[22:23]
    """)
    F = 96
    A(f"""
    v_lshlrev_b32 {v(t0)}, 4, {v(TID)}
    s_lshl_b32 s19, s2, 12
    """)
    sbase(A, 20, S_WS, WS_MH, 19)
    for q in range(4): A(f"v_mov_b32 {v(F+q)}, {SENT:#x}")
    A(f"""
    v_lshlrev_b32 {v(t1)}, 2, {v(TID)}
    s_lshl_b32 s19, s2, 10
    """)
    sbase(A, 22, S_WS, WS_P, 19)
    A(f"global_store_dword {v(t1)}, {v(F)}, s[22:23]")
    A(f"s_and_b32 s19, s19, 0x3fff")
    sbase(A, 22, S_WS, WS_M, 19)
    A(f"global_store_dword {v(t1)}, {v(F)}, s[22:23]")
    A(f"s_lshl_b32 s19, s2, 8\nv_mov_b32 {v(fe)}, 0")
    sbase(A, 22, S_WS, 0, 19)
    A(f"global_store_byte {v(TID)}, {v(fe)}, s[22:23]")
    A(f"""
    s_and_b32 s19, s2, 126
    s_cmp_eq_u32 s19, 0
    s_cbranch_scc0 K0_nomem
    s_and_b32 s19, s2, 1
    s_lshl_b32 s19, s19, 2
    s_add_u32 s19, s19, s{S_W}
    s_lshl_b32 s19, s19, 7
    v_and_b32 {v(t1)}, 7, v0
    v_lshlrev_b32 {v(t1)}, 10, {v(t1)}
    v_lshrrev_b32 {v(fe)}, 3, v0
    v_lshl_add_u32 {v(t1)}, {v(fe)}, 4, {v(t1)}
    v_add_u32 {v(t1)}, s19, {v(t1)}
    v_mov_b32 {v(fe)}, {v(F)}
    global_load_dwordx4 {v(F,4)}, {v(t1)}, s[28:29]
    s_waitcnt vmcnt(0)
    v_cmp_eq_u32 vcc, {v(fe)}, {v(F)}
    v_cndmask_b32 {v(F)}, {v(F)}, -1, vcc
    K0_nomem:
    global_store_dwordx4 {v(t0)}, {v(F,4)}, s[20:21]
    """)
    A(f"s_cmp_eq_u32 s{S_G}, 0\ns_cbranch_scc0 K0_g1")
    sbase(A, 20, S_WS, WS_FF, 18)
    for j in range(4): A(f"global_store_dwordx4 {v(L16)}, {v(R.FA+4*j,4)}, s[20:21] offset:{1024*j}")
    A(f"s_branch K0_main\nK0_g1:\ns_cmp_eq_u32 s{S_G}, 1\ns_cbranch_scc0 K0_g2")
    sbase(A, 20, S_WS, WS_FI, 18)
    A(f"""
    s_lshl_b32 s19, s{S_H}, 4
    v_add_u32 {v(d0)}, s19, {v(n)}           ; d
    s_lshl_b32 s19, s{S_W}, 6
    v_lshl_add_u32 {v(fe)}, {v(g)}, 2, s19   ; f base
    """)
    for j in range(4):
        for q in range(4):
            A(f"v_add_u32 {v(ph)}, {16*j+q}, {v(fe)}\nv_mul_u32_u24 {v(t0)}, {v(ph)}, {v(d0)}\nv_add_u32 {v(t1)}, 128, {v(t0)}")
            if j == 0 and q == 0:
                A(f"v_cmp_eq_u32 vcc, 0, {v(ph)}\nv_lshlrev_b32 {v(sc)}, 8, {v(d0)}\nv_cndmask_b32 {v(t1)}, {v(t1)}, {v(sc)}, vcc\nv_cndmask_b32 {v(sc)}, 2.0, 1.0, vcc")
            elif j == 0 and q == 1: A(f"v_mov_b32 {v(sc)}, 2.0")
            for e in range(2):
                cosidx(A, t0+e, t0+e, 9)
                A(f"v_mul_f32 {v(t0+e)}, {v(t0+e)}, {v(sc)}")
            cvt(A, F+q, t0, t1)
        A(f"global_store_dwordx4 {v(L16)}, {v(F,4)}, s[20:21] offset:{1024*j}")
    A(f"s_branch K0_main\nK0_g2:\ns_cmp_eq_u32 s2, 64\ns_cbranch_scc0 K0_g3")
    A(f"s_lshl_b32 s19, s{S_W}, 12")
    sbase(A, 20, S_WS, WS_CT, 19)
    A(f"s_lshl_b32 s19, s{S_W}, 4\nv_add_u32 {v(fe)}, s19, {v(n)}")
    for q4 in range(4):
        for q in range(4):
            for e in range(2):
                A(f"v_lshl_add_u32 {v(t0+e)}, {v(g)}, 3, {32*(q4 & 1) + 2*q + e}\nv_mul_u32_u24 {v(t0+e)}, {v(t0+e)}, {v(fe)}")
                if q4 >= 2: A(f"v_add_u32 {v(t0+e)}, 48, {v(t0+e)}")
                cosidx(A, t0+e, t0+e, 6)
            cvt(A, F+q, t0, t1)
        A(f"global_store_dwordx4 {v(L16)}, {v(F,4)}, s[20:21] offset:{1024*q4}")
    sbase(A, 20, 20, 0x8000)
    for q4 in range(4):
        for q in range(4):
            A(f"v_lshl_add_u32 {v(F+q)}, {v(g)}, 2, {16*(q4 & 1) + q}\nv_mul_u32_u24 {v(F+q)}, {v(F+q)}, {v(fe)}")
            if q4 >= 2: A(f"v_add_u32 {v(F+q)}, 1536, {v(F+q)}")
            cosidx(A, F+q, F+q, 11)
            A(f"v_mul_f32 {v(F+q)}, {fbits(2.0**-10):#x}, {v(F+q)}")
        A(f"global_store_dwordx4 {v(L16)}, {v(F,4)}, s[20:21] offset:{1024*q4}")
    A(f"""
    s_and_b32 s19, s{S_W}, 1
    s_lshl_b32 s19, s19, 4
    v_add_u32 {v(fe)}, s19, {v(n)}           ; k2
    s_lshr_b32 s19, s{S_W}, 1
    s_mul_i32 s19, s19, 24
    """)
    for q in range(4):
        for e in range(2):
            j = 2*q + e
            A(f"v_lshl_add_u32 {v(t0+e)}, {v(g)}, 2, {16*(j >> 2) + (j & 3)}\nv_mad_u32_u24 {v(t0+e)}, {v(t0+e)}, {v(fe)}, s19")
            cosidx(A, t0+e, t0+e, 5)
        cvt(A, F+q, t0, t1)
    A(f"s_lshl_b32 s19, s{S_W}, 10")
    sbase(A, 20, S_WS, WS_CT + 0x4000, 19)
    A(f"global_store_dwordx4 {v(L16)}, {v(F,4)}, s[20:21]")
    A(f"s_branch K0_main\nK0_g3:\ns_lshr_b32 s19, s2, 3\ns_cmp_eq_u32 s19, 12\ns_cbranch_scc0 K0_main")
    k, km = 108, 109
    Wv = 112
    A(f"""
    s_and_b32 s19, s2, 7
    s_lshl_b32 s19, s19, 8
    v_add_u32 {v(k)}, s19, {v(TID)}
    v_sub_u32 {v(km)}, 2048, {v(k)}
    v_and_b32 {v(km)}, 2047, {v(km)}
    v_mul_u32_u24 {v(t0)}, 514, {v(k)}
    v_mul_u32_u24 {v(t1)}, 514, {v(km)}
    """)
    for q, (ad_, sp, off) in enumerate([(t0, 24, 0), (t0, 26, 0), (t1, 24, 0), (t1, 26, 0), (t0, 24, 512), (t0, 26, 512), (t1, 24, 512), (t1, 26, 512)]):
        A(f"global_load_ushort {v(Wv+q)}, {v(ad_)}, s[{sp}:{sp+1}] offset:{off}")
    A(f"""
    ; position: k1 = k&63, k2 = k>>6 : (k1>>4)*2048 + (k2>>4)*1024 + ((k2>>2)&3)*256 + (k1&15)*16 + (k2&3)*4
    v_bfe_u32 {v(fe)}, {v(k)}, 4, 2
    v_lshlrev_b32 {v(fe)}, 11, {v(fe)}
    v_lshrrev_b32 {v(ph)}, 8, {v(k)}
    v_lshl_add_u32 {v(fe)}, {v(ph)}, 8, {v(fe)}
    v_and_b32 {v(ph)}, 15, {v(k)}
    v_lshl_add_u32 {v(fe)}, {v(ph)}, 4, {v(fe)}
    v_bfe_u32 {v(ph)}, {v(k)}, 6, 2
    v_lshl_add_u32 {v(fe)}, {v(ph)}, 2, {v(fe)}
    s_waitcnt vmcnt(0)
    """)
    for q in range(8): A(f"v_lshlrev_b32 {v(Wv+q)}, 16, {v(Wv+q)}")
    A(f"""
    v_add_f32 {v(Wv)}, {v(Wv)}, {v(Wv+2)}
    v_sub_f32 {v(Wv+1)}, {v(Wv+1)}, {v(Wv+3)}
    v_add_f32 {v(Wv+4)}, {v(Wv+4)}, {v(Wv+6)}
    v_sub_f32 {v(Wv+5)}, {v(Wv+5)}, {v(Wv+7)}
    v_add_f32 {v(Wv+2)}, {v(Wv)}, {v(Wv+4)}
    v_add_f32 {v(Wv+3)}, {v(Wv+1)}, {v(Wv+5)}
    v_sub_f32 {v(Wv+6)}, {v(Wv)}, {v(Wv+4)}
    v_sub_f32 {v(Wv+7)}, {v(Wv+1)}, {v(Wv+5)}
    """)
    for q in (2, 3, 6, 7): A(f"v_mul_f32 {v(Wv+q)}, {fbits(0.25):#x}, {v(Wv+q)}")
    cvt(A, Wv, Wv+2, Wv+3); cvt(A, Wv+1, Wv+6, Wv+7)
    sbase(A, 20, S_WS, WS_WT); sbase(A, 22, S_WS, WS_WB)
    A(f"global_store_dword {v(fe)}, {v(Wv)}, s[20:21]\nglobal_store_dword {v(fe)}, {v(Wv+1)}, s[22:23]")
    A(f"K0_main:\ns_lshl_b32 s18, s{S_H}, 16\ns_lshl_b32 s19, s{S_G}, 10\ns_add_u32 s18, s18, s19")
    sbase(A, 34, S_WS, WS_Y1, 18)
    A("s_mov_b32 s36, 0\ns_waitcnt vmcnt(0)\nK0_seg:")
    R.compute(A, 1)
    A("s_add_u32 s36, s36, 1\ns_cmp_lt_u32 s36, 8\ns_cbranch_scc0 K0_last")
    sbase(A, 30, 30, 32768); sbase(A, 32, 32, 32768)
    R.load(A, 30, 32, "")
    R.finish(A, 34, "")
    sbase(A, 34, 34, 128)
    A("s_branch K0_seg\nK0_last:")
    R.finish(A, 34, "")
    A("K0_end:\ns_endpgm")
    return A.text()
```

```python
from common import *
from fft import *
import k0, loader, worker, rec
S_XCC, S_TK, S_SLOW = 70, 71, 72
def gen_kb(force_slow=False, prof=False, **ro):
    A = Asm()
    nst = [0]
    def stamp():
        if prof:
            A(f"s_memrealtime s[{76+2*nst[0]}:{77+2*nst[0]}]"); nst[0] += 1
    k0.prologue(A, "KB_end")
    stamp()
    A(f"""
    v_and_b32 v0, 63, v0
    s_getreg_b32 s{S_XCC}, hwreg(HW_REG_XCC_ID)
    s_and_b32 s{S_XCC}, s{S_XCC}, 15
    {"s_mov_b32 s%d, 0" % S_XCC if force_slow else ""}
    s_mov_b32 s{S_L}, 0
    s_mov_b32 s{S_EP}, 0
    s_mov_b32 s{worker.S_PB}, 0
    s_mov_b32 s{rec.S_PAR}, 0
    s_mov_b32 s{rec.S_SLOT}, 0
    s_waitcnt lgkmcnt(0)
    s_cmp_eq_u32 s{S_W}, 0
    s_cbranch_scc0 KB_tk
    s_lshl_b32 s20, s{S_XCC}, 8
    v_mov_b32 v1, s20
    v_mov_b32 v2, 1
    v_mov_b32 v4, 24576
    s_mov_b64 exec, 1
    global_atomic_add v3, v1, v2, s[{S_WS}:{S_WS+1}] offset:{WS_EL} sc0 sc1
    s_waitcnt vmcnt(0)
    ds_write_b32 v4, v3
    s_waitcnt lgkmcnt(0)
    s_mov_b64 exec, -1
    KB_tk:
    KB_layer:
    s_lshl_b32 s20, s{S_L}, 21
    """)
    sbase(A, 30, S_WS, WS_Y1, 20); sbase(A, 32, S_WS, WS_Y2, 20)
    def wait_y1():
        A(f"s_cmp_eq_u32 s{S_L}, 0\ns_cbranch_scc1 KB_y1d\ns_lshr_b32 s22, s{S_WG}, 3\ns_lshl_b32 s22, s22, 8\nv_lshlrev_b32 v126, 2, v0\ns_mov_b32 s{S_TO}, 0")
        sbase(A, 20, S_WS, WS_Y1F, 22)
        A("KB_y1:\nglobal_load_dword v127, v126, s[20:21] sc1")
        spin_guard(A)
        A("s_waitcnt vmcnt(0)\nv_cmp_eq_u32 vcc, 0, v127\ns_cbranch_vccz KB_y1d\ns_sleep 2\ns_branch KB_y1\nKB_y1d:")
    column(A, S_WG, 30, 32, wait_y1, "KB_c")
    worker.post_flag(A, WS_Y2F, S_WG, "KB_y2f")
    A(f"s_cmp_eq_u32 s{S_L}, 0\ns_cbranch_scc0 KB_roles")
    stamp()
    A(f"""
    v_mov_b32 v4, 24576
    ds_read_b32 v3, v4
    v_and_b32 v1, 15, v0
    v_lshlrev_b32 v1, 8, v1
    s_mov_b32 s{S_TO}, 0
    KB_el:
    global_load_dword v2, v1, s[{S_WS}:{S_WS+1}] offset:{WS_EL} sc1
    """)
    spin_guard(A)
    A(f"""
    s_waitcnt vmcnt(0) lgkmcnt(0)
    s_mov_b32 s20, 0          ; total
    s_mov_b32 s21, 0          ; below
    s_mov_b32 s22, 0
    """)
    for x in range(16):
        A(f"v_readlane_b32 s23, v2, {x}\ns_cmp_lt_u32 {x}, s{S_XCC}\ns_cselect_b32 s24, s23, 0\ns_add_u32 s21, s21, s24\ns_add_u32 s20, s20, s23\ns_or_b32 s22, s22, s23")
    A(f"""
    s_cmp_eq_u32 s20, 256
    s_cbranch_scc0 KB_el
    v_readfirstlane_b32 s{S_TK}, v3
    s_add_u32 s21, s21, s{S_TK}
    s_lshr_b32 s{S_G}, s21, 5
    s_and_b32 s{S_G}, s{S_G}, 7
    s_and_b32 s{S_H}, s21, 31
    s_and_b32 s{S_SLOW}, s22, 31
    {"s_mov_b32 s%d, 1" % S_SLOW if force_slow else ""}
    """)
    loader.load_weights(A)
    A("s_barrier")
    stamp()
    A(f"KB_roles:\ns_cmp_eq_u32 s{S_SLOW}, 0\ns_cbranch_scc0 KB_slow")
    for st, lab in (("", "F"), ("sc1", "S")):
        if st: A("KB_slow:")
        A(f"s_cmp_eq_u32 s{S_G}, 0\ns_cbranch_scc0 {lab}_worker")
        rec.rec(A, st, lab + "r", **ro)
        A(f"s_branch KB_next\n{lab}_worker:")
        worker.worker(A, st, lab + "w")
        A("s_branch KB_next")
    A(f"KB_next:")
    if prof:
        A(f"s_cmp_eq_u32 s{S_L}, 0\ns_cbranch_scc0 KB_p1\ns_memrealtime s[82:83]\ns_waitcnt lgkmcnt(0)\nKB_p1:")
    A(f"s_add_u32 s{S_L}, s{S_L}, 1\ns_cmp_lt_u32 s{S_L}, 2\ns_cbranch_scc1 KB_layer")
    if prof:
        A("s_memrealtime s[84:85]\ns_waitcnt lgkmcnt(0)")
        for q in range(5): A(f"v_mov_b32 v{4+q}, s{76+2*q}")
        A(f"v_mov_b32 v9, s{S_G}\nv_mov_b32 v10, s{S_H}\nv_mov_b32 v11, s{S_SLOW}\ns_lshl_b32 s20, s{S_WG}, 5\nv_mov_b32 v1, s20")
        sbase(A, 20, S_WS, 0x8000)
        A("global_store_dwordx4 v1, v[4:7], s[20:21]\nglobal_store_dwordx4 v1, v[8:11], s[20:21] offset:16")
    A("s_waitcnt vmcnt(0)\nKB_end:\ns_endpgm")
    A("KB_fail:\ns_load_dwordx2 s[20:21], s[0:1], 88\ns_mov_b64 exec, -1\nv_mov_b32 v1, 0\nv_mov_b32 v2, 1\ns_waitcnt lgkmcnt(0)\nglobal_atomic_add v1, v2, s[20:21]\ns_waitcnt vmcnt(0)\ns_endpgm")
    return A.text()
```

```python
from common import *
def load_weights(A):
    AG, AGO, GA, AQ0, AQ1, AV, AO0, AO1, VWA = 1, 2, 3, 4, 5, 6, 7, 8, 9
    n, gb, rr, t0, t1 = 10, 11, 12, 13, 14
    TMP, PARK = 16, 48
    A(f"""
    s_load_dwordx4 s[24:27], s[0:1], 40
    s_load_dwordx4 s[28:31], s[0:1], 56
    v_and_b32 {v(n)}, 15, v0
    v_lshrrev_b32 {v(gb)}, 4, v0
    v_lshrrev_b32 {v(t0)}, 2, v0
    v_lshlrev_b32 {v(AG)}, 13, {v(t0)}
    v_and_b32 {v(t0)}, 3, v0
    v_lshl_add_u32 {v(AG)}, {v(t0)}, 4, {v(AG)}
    s_lshl_b32 s{S_T0}, s{S_H}, 8
    s_lshl_b32 s{S_T1}, s{S_W}, 6
    s_add_u32 s{S_T0}, s{S_T0}, s{S_T1}
    v_add_u32 {v(AG)}, s{S_T0}, {v(AG)}
    ; O source: h*131072 + (l>>3)*1024 + w*128 + (l&7)*16
    v_lshrrev_b32 {v(t1)}, 3, v0
    v_lshlrev_b32 {v(AGO)}, 10, {v(t1)}
    v_and_b32 {v(t1)}, 7, v0
    v_lshl_add_u32 {v(AGO)}, {v(t1)}, 4, {v(AGO)}
    s_lshl_b32 s{S_T0}, s{S_H}, 17
    s_lshl_b32 s{S_T1}, s{S_W}, 7
    s_add_u32 s{S_T0}, s{S_T0}, s{S_T1}
    v_add_u32 {v(AGO)}, s{S_T0}, {v(AGO)}
    s_lshl_b32 s{S_T3}, s{S_W}, 15
    s_add_u32 s{S_T3}, s{S_T3}, {LDS_WV}
    v_lshlrev_b32 {v(VWA)}, 4, v0
    v_add_u32 {v(VWA)}, s{S_T3}, {v(VWA)}
    v_lshrrev_b32 {v(rr)}, 2, {v(n)}
    v_lshrrev_b32 {v(t1)}, 1, {v(gb)}
    v_lshlrev_b32 {v(AV)}, 4, {v(t1)}
    v_and_b32 {v(t1)}, 1, {v(gb)}
    v_lshl_add_u32 {v(AV)}, {v(t1)}, 2, {v(AV)}
    v_and_b32 {v(t1)}, 1, {v(rr)}
    v_add_u32 {v(AV)}, {v(AV)}, {v(t1)}
    v_lshrrev_b32 {v(rr)}, 1, {v(rr)}
    v_lshl_add_u32 {v(AV)}, {v(rr)}, 3, {v(AV)}
    v_lshlrev_b32 {v(AV)}, 6, {v(AV)}
    v_lshl_add_u32 {v(AV)}, {v(t0)}, 3, {v(AV)}
    v_add_u32 {v(AV)}, s{S_T3}, {v(AV)}
    v_lshl_add_u32 {v(AQ0)}, {v(rr)}, 12, {v(AV)}
    v_xor_b32 {v(AQ1)}, 512, {v(AQ0)}
    v_and_b32 {v(t1)}, 1, {v(gb)}
    v_lshlrev_b32 {v(AO0)}, 11, {v(t1)}
    v_lshrrev_b32 {v(t1)}, 1, {v(gb)}
    v_lshl_add_u32 {v(AO0)}, {v(t1)}, 9, {v(AO0)}
    v_lshl_add_u32 {v(AO0)}, {v(n)}, 2, {v(AO0)}
    v_add_u32 {v(AO0)}, s{S_T3}, {v(AO0)}
    v_xor_b32 {v(AO1)}, 2048, {v(AO0)}
    s_mov_b32 s22, 0x05040100
    s_mov_b32 s23, 0x07060302
    s_waitcnt lgkmcnt(0)
    """)
    def issue(i):
        c = CHUNKS[i]; slot = (i & 3) * 8192
        if c[0] == "o":
            A(f"s_add_u32 s{S_T0}, s{S_W}, {c[1]}\ns_and_b32 s{S_T0}, s{S_T0}, 3\ns_lshl_b32 s{S_T0}, s{S_T0}, 15")
        else:
            rho = c[1] if c[0] == "qk" else 2*c[1]
            A(f"s_lshl_b32 s{S_T0}, s{S_W}, 1\ns_add_u32 s{S_T0}, s{S_T0}, {rho}\ns_and_b32 s{S_T0}, s{S_T0}, 7\ns_lshl_b32 s{S_T0}, s{S_T0}, 19")
        for k in range(8):
            if c[0] == "qk": off, sp = (k & 3) * 131072, 24 + 2*(k >> 2)
            elif c[0] == "v": off, sp = k * 131072, 28
            else: off, sp = (k & 3) * 8192 + (k >> 2) * 512, 30
            A(f"s_add_u32 s{S_T1}, s{S_T0}, {off}\ns_add_u32 m0, s{S_T3}, {slot + 1024*k}\nv_add_u32 {v(GA)}, s{S_T1}, {v(AGO if c[0] == 'o' else AG)}")
            A(f"global_load_lds_dwordx4 {v(GA)}, s[{sp}:{sp+1}]")
    for i in range(4): issue(i)
    parked = []; free = [PARK + 8*k for k in range(8)]; nflushed = 0
    for i, c in enumerate(CHUNKS):
        slot = (i & 3) * 8192
        A(f"s_waitcnt vmcnt({8*min(3, 15 - i)})")
        dst = {}
        for f in chunk_frags(c):
            if f in LDS_SET:
                dst[f] = free.pop(0); parked.append((f, dst[f]))
            else: dst[f] = wres(f)
        if c[0] == "o":
            for J in range(2):
                for q in range(8):
                    flip = c[1] == 0 and (q & 1)
                    for b in range(2):
                        A(f"ds_read_b32 {v(TMP+2*q+b)}, {v(AO1 if flip else AO0)} offset:{slot + J*4096 + (8*(q >> 2) + 2*((q >> 1) & 1) + b)*128 + (q & 1)*64}")
                    if q == 3: A("s_waitcnt lgkmcnt(7)")
                A("s_waitcnt lgkmcnt(0)")
                for q in range(8):
                    for par in range(2):
                        A(f"v_perm_b32 {v(dst[('o', c[1], 2*J+par)]+q)}, {v(TMP+2*q+1)}, {v(TMP+2*q)}, s{22+par}")
        else:
            for k, f in enumerate(chunk_frags(c)):
                for u in range(4):
                    if c[0] == "qk": ad, off = (AQ1 if f[2] else AQ0), f[3]*32
                    else: ad, off = AV, f[2]*32 + (f[1] & 1)*4096
                    A(f"ds_read_b64_tr_b16 {r(dst[f]+2*u,2)}, {v(ad)} offset:{slot + off + (32*(u >> 1) + 2*(u & 1))*64}")
                if k == 1: A("s_waitcnt lgkmcnt(7)")
            A("s_waitcnt lgkmcnt(0)")
        if i + 4 < 16: issue(i + 4)
        else:
            for _ in range(4):
                f, p = parked.pop(0)
                assert wslot(f) // 8192 == (i & 3)
                A(f"ds_write_b128 {v(VWA)}, {v(p,4)} offset:{wslot(f)}\nds_write_b128 {v(VWA)}, {v(p+4,4)} offset:{wslot(f)+1024}")
                free.append(p)
            A("s_waitcnt lgkmcnt(0)")
    assert not parked
```

```python
from common import *
from worker import onehot
from fft import lane_consts
RR3, IDX, IDB = 3, 1, 18
L16, RR1, RR2, MW, MR1, MR2, MR3, SMW, OWA, OR1, OR2, OR3, VWA = 4, 5, 6, 7, 8, 9, 10, 11, 12, 13, 14, 15, 16
RR0, SP1, SP2 = 17, 2, 0
XF = 20; RF = 52; DA = 64; DB = 68; DVA = 72; DVB = 76; KX = 80; PVA = 88; B0 = 104; B1 = 112; B2 = 120
APST = 74
LDS_MEM, LDS_S0, LDS_SM, LDS_O, LDS_C = 0, 8192, 8192+1024, 16384, 24576
PRE = {SEQ[0]: XF+8, SEQ[1]: XF+16, SEQ[2]: XF+24, SEQ[3]: B0, SEQ[4]: B1, SEQ[5]: B2}
LBUF = {**PRE, SEQ[19]: B0, SEQ[23]: B1, SEQ[27]: B2, SEQ[31]: B0, ("v",2,0): B1, ("v",2,1): B2, ("v",3,0): B0,
        ("o",0,0): B1, ("o",0,1): B2, ("o",0,2): B0}
assert set(LBUF) == set(LDS_SET)
def wreg(f): return LBUF[f] if f in LBUF else wres(f)
sKV, sTCH, sMH, sP0, sP1, sPL, sONE, sMS, sML, sMR, sM4, sM1, sC, sFL, sPUB, sMB = 24, 26, 28, 30, 32, 34, 40, 42, 44, 46, 48, 50, 52, 54, 56, 60
sTMP = 58; sLIM, sSENT, sSTEP = 62, 63, 64
S_PAR, S_SLOT = 38, 39

def rec(A, st, lab, d1=260, d2=170, g1=128, g2=150, stag=64, nv1=5):
    DS = Ctr(A, "lgkmcnt", 15); VM = Ctr(A, "vmcnt", 63)
    sm = lambda d, x, wr: smf(A, d, x, wr, IDX)
    cv = lambda d, x, y: cvt(A, d, x, y)
    sp = lambda x: f"s[{x}:{x+1}]"
    def delay(n):
        n //= 4
        while n > 0:
            k = min(n, 16); A(f"s_nop {k-1}"); n -= k
    def wld(f, half=None):
        for hf in ((0, 1) if half is None else (half,)):
            DS.issue(f"ds_read_b128 {v(LBUF[f]+4*hf,4)}, {v(VWA)} offset:{wslot(f)+hf*1024}", f)
    def mbases():
        sbase(A, sMS, sMB, 0, S_SLOT)
        A(f"s_xor_b32 s{S_SLOT}, s{S_SLOT}, 0x2000")
        sbase(A, sMR, sMB, 0, S_SLOT)
    H, W = f"s{S_H}", f"s{S_W}"
    N_, G_, HH, N7, t0, t1, t2 = 40, 41, 42, 43, 44, 45, 46
    lane_consts(A, 0, N_, G_)
    A(f"""
    v_lshlrev_b32 {v(L16)}, 4, v0
    s_lshl_b32 s20, {W}, 15
    s_add_u32 s20, s20, {LDS_WV}
    v_add_u32 {v(VWA)}, s20, {v(L16)}
    v_lshrrev_b32 v{HH}, 3, v{N_}
    v_and_b32 v{N7}, 7, v0
    v_mov_b32 v{t0}, 0x4444
    v_mov_b32 v{t1}, 0xeeee
    v_cmp_eq_u32 vcc, 1, v{HH}
    v_cndmask_b32 {v(IDX)}, v{t0}, v{t1}, vcc
    v_lshlrev_b32 v{t2}, 2, v{G_}
    v_sub_u32 v{t2}, v{N_}, v{t2}
    """)
    onehot(A, IDB, 2, t2, t0)
    A(f"v_and_b32 v{t0}, 3, v{N_}\nv_lshlrev_b32 v{t0}, 2, v{t0}\nv_lshrrev_b32 v{t1}, 2, v{N_}\nv_add_u32 v{t2}, v{t0}, v{t1}")
    onehot(A, 52, 4, t2, t0)
    A(f"""
    ds_write_b128 {v(L16)}, v[52:55] offset:{LDS_C}
    v_lshrrev_b32 v{t0}, 1, v{G_}
    v_lshlrev_b32 v{t0}, 3, v{t0}
    v_lshrrev_b32 v{t1}, 2, v{N_}
    v_lshl_add_u32 v{t0}, v{t1}, 1, v{t0}
    v_and_b32 v{t1}, 1, v{G_}
    v_add_u32 v{t0}, v{t0}, v{t1}
    s_lshl_b32 s20, {W}, 4
    v_add_u32 v{t0}, s20, v{t0}
    v_lshlrev_b32 v{t0}, 11, v{t0}
    v_and_b32 v{t1}, 3, v0
    v_lshl_add_u32 v{t0}, v{t1}, 4, v{t0}
    s_lshl_b32 s20, {H}, 6
    v_add_u32 {v(APST)}, s20, v{t0}
    v_lshlrev_b32 v{t2}, 4, v{G_}
    v_lshl_add_u32 v{t2}, v{t1}, 2, v{t2}
    s_lshl_b32 s20, {W}, 5
    s_add_u32 s20, s20, {H}
    s_lshl_b32 s21, s20, 6
    v_add_u32 {v(SP1)}, s21, v{t2}
    s_lshl_b32 s21, s20, 11
    """)
    sbase(A, sPL, S_WS, WS_P, 21); sbase(A, sP0, S_WS, WS_P); sbase(A, sP1, S_WS, WS_P + 0x20000); sbase(A, sMB, S_WS, WS_M)
    A(f"""
    s_lshl_b32 s20, {W}, 11
    v_add_u32 {v(MW)}, s20, {v(L16)}
    s_mov_b32 m0, s20
    s_lshl_b32 s20, {W}, 2
    v_add_u32 {v(SMW)}, s20, {v(L16)}
    v_lshlrev_b32 v{t0}, 7, v{G_}
    v_lshl_add_u32 v{t0}, v{N7}, 4, v{t0}
    v_lshl_add_u32 v{t1}, v{HH}, 3, v{t0}
    s_lshl_b32 s20, {W}, 9
    v_add_u32 {v(OWA)}, s20, v{t1}
    """)
    for c, reg, oreg in ((1, MR1, OR1), (2, MR2, OR2), (3, MR3, OR3)):
        A(f"s_add_u32 s21, {W}, {c}\ns_and_b32 s21, s21, 3\ns_lshl_b32 s20, s21, 11\nv_add_u32 {v(reg)}, s20, {v(L16)}\ns_lshl_b32 s20, s21, 9\nv_add_u32 {v(oreg)}, s20, v{t0}")
    A(f"""
    v_xor_b32 {v(RR3)}, 0x80, {v(MR3)}
    v_xor_b32 {v(RR2)}, 0x80, {v(MR2)}
    v_xor_b32 {v(RR1)}, 0x80, {v(MR1)}
    v_xor_b32 {v(RR0)}, 0x80, {v(MW)}
    ds_write_b32 {v(MW)}, {v(APST)} offset:{LDS_C+1024}
    s_lshl_b32 s20, {H}, 2
    s_add_u32 s20, s20, {W}
    s_lshl_b32 s20, s20, 12
    s_mul_i32 s21, s{S_L}, {KV_LAYER:#x}
    s_add_u32 s20, s20, s21
    """)
    sbase(A, sKV, S_WS, WS_KV, 20); sbase(A, sTCH, sKV, 0x80000)
    A(f"s_lshl_b32 s20, s{S_L}, 19")
    sbase(A, sMH, S_WS, WS_MH, 20)
    A(f"s_lshl_b32 s20, {W}, 11")
    sbase(A, sML, sMH, 0, 20)
    A(f"s_lshl_b32 s20, {H}, 8")
    sbase(A, sFL, S_WS, WS_KVF, 20)
    mbases()
    A(f"""
    s_mov_b32 s{sONE}, 0x3f803f80
    s_mov_b32 s{sONE+1}, 0x3f803f80
    s_mov_b32 s{sM4}, 0x000f000f
    s_mov_b32 s{sM4+1}, 0x000f000f
    s_mov_b32 s{sM1}, 0x11111111
    s_mov_b32 s{sM1+1}, 0x11111111
    s_mov_b32 s{sC}, {fbits(C_SCALE):#x}
    s_mov_b32 s{sC+1}, {fbits(C_SCALE):#x}
    s_mov_b32 s{sLIM}, {fbits(60.0):#x}
    s_mov_b32 s{sSENT}, {SENT:#x}
    s_mov_b32 s{sSTEP}, 0
    s_mov_b64 {sp(sPUB)}, 0
    s_waitcnt lgkmcnt(0)
    """)
    dma = lambda: A(f"global_load_lds_dwordx4 {v(L16)}, {sp(sML)} sc1\nglobal_load_lds_dwordx4 {v(L16)}, {sp(sML)} offset:1024 sc1")
    dma()
    for q in range(16): A(f"v_mov_b32 {v(PVA+q)}, 0")
    for q in range(0, 16, 2): A(f"v_mov_b64 {v(DA+q,2)}, 0")
    for f in PRE: wld(f)
    A(f"s_mov_b32 s{S_TO}, 0\n{lab}_k0:\nglobal_load_dwordx2 {v(KX,2)}, {v(PVA)}, {sp(sFL)} sc1")
    spin_guard(A)
    A(f"""
    s_waitcnt vmcnt(0)
    v_min_u32 {v(KX)}, {v(KX)}, {v(KX+1)}
    v_cmp_ge_u32 vcc, s{S_L}, {v(KX)}
    s_cbranch_vccz {lab}_k1
    s_sleep 1
    s_branch {lab}_k0
    {lab}_k1:
    global_load_dwordx4 {v(KX,4)}, {v(L16)}, {sp(sKV)} sc1
    global_load_dwordx4 {v(KX+4,4)}, {v(L16)}, {sp(sKV)} offset:1024 sc1
    global_load_dwordx4 {v(PVA+2,4)}, {v(L16)}, {sp(sKV)} offset:2048 sc1
    global_load_dwordx4 {v(PVA+10,4)}, {v(L16)}, {sp(sKV)} offset:3072 sc1
    s_mov_b32 s{S_TO}, 0
    s_waitcnt vmcnt(0) lgkmcnt(0)
    s_barrier
    """)
    DS.assume([])
    sbase(A, sFL, sFL, 8)
    xf = lambda rho: XF + 4*rho
    rf = lambda rho: RF + 4*(rho % 3)
    PB0, PB1 = PVA + 2, PVA + 10
    A(f"s_branch {lab}_top\n.p2align 6\n{lab}_top:")
    rotq = lambda dst, src, q: A(f"v_mov_b32_dpp {v(dst+q)}, {v(src+q)} row_ror:8 row_mask:0xf bank_mask:0xf")
    xrd = lambda rho: DS.issue(f"ds_read_b128 {v(xf(rho),4)}, {v((MW, MR1, MR2, MR3)[rho//2])} offset:{LDS_MEM + (rho & 1)*1024}", ("x", rho))
    rrd = lambda rho: DS.issue(f"ds_read_b128 {v(rf(rho),4)}, {v((RR0, RR1, RR2, RR3)[rho//2])} offset:{LDS_MEM + (rho & 1)*1024}", ("r", rho))
    vxl = lambda t: VM.issue(f"global_load_dwordx4 {v(PVA+8*t+2,4)}, {v(L16)}, {sp(sKV)} offset:{2048+t*1024} sc1", "vx")
    G = {}
    P_ = lambda g, f: G.setdefault(g, []).append(f)
    A("s_waitcnt vmcnt(3)"); xrd(0); A("s_waitcnt vmcnt(2)"); xrd(1); rrd(0); rrd(1)
    DS.wait(("x", 0))
    P_(0, lambda: A(f"v_cmp_eq_u32 vcc, s{sSENT}, {v(xf(0))}"))
    P_(1, lambda: (DS.wait(("x", 1)), A(f"v_cmp_eq_u32 {sp(sTMP)}, s{sSENT}, {v(xf(1))}")))
    P_(2, lambda: A(f"s_or_b64 vcc, vcc, {sp(sTMP)}\ns_cbranch_scc1 {lab}_p2retry"))
    P_(6, lambda: (A("s_barrier"), xrd(2)))
    rds = {7: lambda: rrd(2), 8: lambda: xrd(3), 9: lambda: wld(SEQ[19], 0), 10: lambda: rrd(3), 11: lambda: wld(SEQ[19], 1),
           12: lambda: rrd(4), 13: lambda: xrd(4), 14: lambda: wld(SEQ[23], 0), 15: lambda: wld(SEQ[23], 1),
           16: lambda: rrd(5), 17: lambda: xrd(5), 18: lambda: wld(SEQ[27], 0), 19: lambda: wld(SEQ[27], 1),
           20: lambda: rrd(6), 21: lambda: xrd(6), 22: lambda: wld(SEQ[31], 0), 23: lambda: wld(SEQ[31], 1),
           24: lambda: rrd(7), 25: lambda: xrd(7), 26: lambda: wld(("v", 2, 0), 0), 27: lambda: wld(("v", 2, 0), 1),
           28: lambda: wld(("v", 2, 1), 0), 29: lambda: wld(("v", 2, 1), 1), 31: lambda: wld(("v", 3, 0), 0), 33: lambda: wld(("v", 3, 0), 1)}
    for g, f in rds.items(): P_(g, f)
    for g, t in {5: ("r", 1), 11: ("r", 2), 15: SEQ[19], 19: SEQ[23], 23: SEQ[27], 27: SEQ[31], 29: ("x", 7), 34: ("v", 2, 1)}.items():
        P_(g, lambda t=t: DS.wait(t))
    P_(8, lambda: vxl(0)); P_(12, lambda: vxl(1))
    P_(9, lambda: A(f"v_lshlrev_b32 {v(SP2)}, 2, {v(L16)}"))
    P_(16, lambda: VM.issue(f"global_load_dword {v(SP2)}, {v(SP2)}, {sp(sTCH)} sc1", "touch"))
    P_(18, lambda: VM.issue(f"global_load_dword {v(SP2)}, {v(PVA)}, {sp(sFL)} sc1", "flag"))
    P_(30, lambda: (A(f"s_mov_b64 exec, {sp(sPUB)}"), VM.issue(f"global_store_dword {v(SP1)}, {v(PVA+1)}, {sp(sMH)} sc1", "pub"), A("s_mov_b64 exec, -1")))
    P_(33, lambda: cv(DA, DA, DA+1)); P_(34, lambda: cv(DA+1, DA+2, DA+3))
    def run(f):
        if f[0] == "qk":
            assert f not in DS.q and ("r" if f[2] else "x", f[1]) not in DS.q, (f, DS.q)
            sm(DB if f[3] else DA, rf(f[1]) if f[2] else xf(f[1]), wreg(f))
        else:
            assert f not in DS.q and ("x", f[1]) not in DS.q, (f, DS.q)
            sm(DVB if f[2] else DVA, xf(f[1]), wreg(f))
    for u, f in enumerate(SEQ):
        run(f)
        for t in G.get(u, []): t()
    vq = [(2, 0), (2, 1), (3, 0), (3, 1)] + [(rho, 0) for rho in range(4, 8)] + [(rho, 1) for rho in range(4, 8)]
    vm = lambda: run(("v",) + vq.pop(0))
    D2A, D2B, X, T0r, T1r, TMr = RF+8, RF+0, DA, RF+0, DB, RF+4
    P = XF; ONES = XF + 8
    vm()
    mf16(A, D2A, DA, IDB)
    cv(DB, DB, DB+1); cv(DB+1, DB+2, DB+3)
    A(f"v_mov_b32 {v(P)}, 0\nv_mov_b32 {v(P+5)}, 0")
    mf16(A, D2B, DB, IDB)
    cv(X, D2A, D2A+1); cv(X+1, D2A+2, D2A+3)
    vm()
    cv(X+2, D2B, D2B+1); cv(X+3, D2B+2, D2B+3)
    A(f"v_mov_b64 {v(ONES,2)}, {sp(sONE)}\nv_mov_b64 {v(ONES+2,2)}, {sp(sONE)}")
    mf32(A, TMr, X, X); mf32(A, T0r, KX, X)
    sbase(A, sKV, sKV, 0x80000)
    DS.wait(("v", 3, 0))
    mf32(A, T1r, KX+4, X)
    mrg = lambda d, x: A(f"v_mov_b32_dpp {v(d)}, {v(x)} row_ror:8 row_mask:0xf bank_mask:0xc")
    mrg(TMr, TMr+1); mrg(TMr+2, TMr+3)
    vm()
    A(f"v_permlane32_swap_b32 {v(TMr+2)}, {v(TMr)}")
    for q in range(4): mrg(T0r+q, T1r+q)
    DS.issue(f"ds_write_b128 {v(MW)}, {v(T0r,4)} offset:{LDS_S0}", "sw")
    DS.issue(f"ds_write_b32 {v(SMW)}, {v(TMr)} offset:{LDS_SM}", "sw")
    fillers = [lambda: VM.issue(f"global_load_dwordx4 {v(KX,4)}, {v(L16)}, {sp(sKV)} sc1", "kx"),
               lambda: wld(("o", 0, 0), 0), lambda: wld(("o", 0, 0), 1),
               lambda: VM.issue(f"global_load_dwordx4 {v(KX+4,4)}, {v(L16)}, {sp(sKV)} offset:1024 sc1", "kx")]
    for k in range(nv1):
        vm()
        if k < len(fillers): fillers[k]()
    DS.wait("sw"); A("s_barrier")
    S1, S2, S3, SMr = RF+4, RF+8, DB, DA
    DS.issue(f"ds_read_b128 {v(S1,4)}, {v(MR1)} offset:{LDS_S0}", "s1")
    DS.issue(f"ds_read_b128 {v(S2,4)}, {v(MR2)} offset:{LDS_S0}", "s2")
    vm()
    DS.issue(f"ds_read_b128 {v(S3,4)}, {v(MR3)} offset:{LDS_S0}", "s3")
    DS.issue(f"ds_read_b128 {v(SMr,4)}, {v(L16)} offset:{LDS_SM}", "sm")
    pka = lambda d, x, y: A(f"v_pk_add_f32 {v(d,2)}, {v(x,2)}, {v(y,2)}")
    late = [lambda: wld(("o", 0, 1), 0), lambda: wld(("o", 0, 1), 1), lambda: wld(("o", 0, 2), 0), lambda: wld(("o", 0, 2), 1)]
    prep = [lambda: A(f"v_permlane32_swap_b32 {v(DVA+2)}, {v(DVA)}"), lambda: A(f"v_permlane32_swap_b32 {v(DVA+3)}, {v(DVA+1)}"),
            lambda: pka(DVA, DVA, DVA+2), lambda: cv(PVA+6, DVA+1, None), lambda: cv(PVA+1, DVA, None)]
    while vq:
        vm(); late.pop(0)(); prep.pop(0)()
    SR = T0r
    DS.wait("s1")
    pka(SR, SR, S1); pka(SR+2, SR+2, S1+2)
    while prep: prep.pop(0)()
    DS.wait("s3")
    pka(S2, S2, S3); pka(S2+2, S2+2, S3+2)
    DS.wait("sm")
    pka(SMr, SMr, SMr+2)
    pka(SR, SR, S2); pka(SR+2, SR+2, S2+2)
    A(f"v_add_f32 {v(SR+4)}, {v(SMr)}, {v(SMr+1)}")
    A(f"v_pk_mul_f32 {v(SR,2)}, {v(SR,2)}, {sp(sC)}\nv_pk_mul_f32 {v(SR+2,2)}, {v(SR+2,2)}, {sp(sC)}\nv_mul_f32 {v(SR+4)}, s{sC}, {v(SR+4)}")
    E = RF + 6
    Lr, D2a, D1a, D2b, D1b = DA, DB, XF+12, XF+16, XF+20
    OA, OACC = XF, XF + 16
    def exps():
        for q in range(5): A(f"v_exp_f32 {v(E+q)}, {v(SR+q)}")
        cv(P+2, E, E+1); cv(P+3, E+2, E+3); cv(P+4, E+4, None); cv(P+1, E+4, None)
    def pv(first):
        if first: VM.wait("vx")
        mf32(A, Lr, ONES, P+2)
        if first: A(f"v_permlane32_swap_b32 {v(DVB+2)}, {v(DVB)}")
        mf32(A, D2a, PVA+4, P+2)
        if first: A(f"v_permlane32_swap_b32 {v(DVB+3)}, {v(DVB+1)}")
        mf32(A, D1a, PVA, P)
        if first:
            pka(DVB, DVB, DVB+2); cv(PVA+14, DVB+1, None); cv(PVA+9, DVB, None)
        A(f"v_add_f32_dpp {v(Lr)}, {v(Lr)}, {v(Lr)} row_ror:8 row_mask:0xf bank_mask:0xf")
        mf32(A, D2b, PVA+12, P+2)
        A(f"v_rcp_f32 {v(Lr)}, {v(Lr)}")
        mf32(A, D1b, PVA+8, P)
        for q in range(4):
            A(f"v_add_f32_dpp {v(D1a+q)}, {v(D2a+q)}, {v(D1a+q)} row_ror:8 row_mask:0xf bank_mask:0x3")
        if first:
            A(f"v_max3_f32 {v(SR+5)}, abs({v(SR)}), abs({v(SR+1)}), abs({v(SR+2)})")
            A(f"v_max3_f32 {v(SR+5)}, abs({v(SR+3)}), abs({v(SR+4)}), {v(SR+5)}")
            A(f"v_cmp_nlt_f32 vcc, {v(SR+5)}, s{sLIM}")
        for q in range(4):
            A(f"v_add_f32_dpp {v(D1a+q)}, {v(D1b+q)}, {v(D2b+q)} row_ror:8 row_mask:0xf bank_mask:0xc")
        A(f"v_pk_mul_f32 {v(D1a,2)}, {v(D1a,2)}, {v(Lr,2)} op_sel_hi:[1,0]\nv_pk_mul_f32 {v(D1a+2,2)}, {v(D1a+2,2)}, {v(Lr,2)} op_sel_hi:[1,0]")
        cv(OA, D1a, D1a+1); cv(OA+1, D1a+2, D1a+3)
    exps()
    pv(True)
    DS.issue(f"ds_write_b64 {v(OWA)}, {v(OA,2)} offset:{LDS_O}", "ow")
    A(f"s_cbranch_vccnz {lab}_slowmax\n{lab}_maxdone:")
    rotq(OA+2, OA, 0); rotq(OA+2, OA, 1)
    for q in (12, 14, 0, 2, 4): A(f"v_mov_b64 {v(OACC+q,2)}, 0")
    DS.wait("ow"); A("s_barrier")
    DS.issue(f"ds_read_b128 {v(OA+4,4)}, {v(OR1)} offset:{LDS_O}", ("oa", 1))
    sm(OACC+12, OA, wreg(("o", 0, 3)))
    DS.issue(f"ds_read_b128 {v(OA+8,4)}, {v(OR2)} offset:{LDS_O}", ("oa", 2))
    A(f"v_mov_b64 {v(OACC+6,2)}, 0")
    sm(OACC, OA, wreg(("o", 0, 0)))
    DS.issue(f"ds_read_b128 {v(OA+12,4)}, {v(OR3)} offset:{LDS_O}", ("oa", 3))
    A(f"v_mov_b64 {v(OACC+8,2)}, 0")
    sm(OACC+4, OA, wreg(("o", 0, 1)))
    while late: late.pop(0)()
    A(f"v_mov_b64 {v(OACC+10,2)}, 0")
    tag = lambda J: A(f"s_mov_b64 exec, {sp(sM1)}\nv_and_or_b32 {v(OACC+8*J)}, {v(OACC+8*J)}, -2, s{S_PAR}")
    un = lambda: A("s_mov_b64 exec, -1")
    pstore = lambda J: VM.issue(f"global_store_dwordx4 {v(APST)}, {v(OACC+8*J,4)}, {sp((sP0, sP1)[J])} {st}", ("p", J))
    og = {2: lambda: DS.issue(f"ds_read_b32 {v(APST)}, {v(MW)} offset:{LDS_C+1024}", "ap"),
          4: lambda: cv(OACC, OACC, OACC+1), 5: lambda: cv(OACC+1, OACC+2, OACC+3),
          6: lambda: (un(), cv(OACC+2, OACC+4, OACC+5)), 7: lambda: cv(OACC+3, OACC+6, OACC+7), 8: lambda: pstore(0),
          10: lambda: cv(OACC+8, OACC+8, OACC+9), 11: lambda: cv(OACC+9, OACC+10, OACC+11)}
    k = 0
    for j in range(4):
        for c in (1, 2, 3):
            DS.wait(("oa", c))
            sm(OACC+4*j, OA+4*c, wreg(("o", c, j)))
            if k == 5: DS.wait(("o", 0, 2), "ap")
            if k in og: og[k]()
            if k == 5:
                sm(OACC+8, OA, wreg(("o", 0, 2))); tag(0)
            k += 1
    tag(1); un()
    cv(OACC+10, OACC+12, OACC+13); cv(OACC+11, OACC+14, OACC+15)
    pstore(1)
    PL, RD, SELA, AM = RF, RF + 8, XF, SP1
    T_ = XF + 4
    ld1 = lambda x, y: A(f"global_load_dwordx4 {v(x,4)}, {v(L16)}, {sp(sPL)} sc1\nglobal_load_dwordx4 {v(y,4)}, {v(L16)}, {sp(sPL)} offset:1024 sc1")
    def chk1(x, y):
        A("s_waitcnt vmcnt(3)"); mf32(A, RD, SELA, x)
        A("s_waitcnt vmcnt(2)"); mf32(A, RD, SELA, y, RD)
        A(f"""
        v_bitop3_b32 {v(T_)}, {v(x)}, {v(y)}, s{S_PAR} bitop3:0x7e
        v_and_b32 {v(T_)}, {v(T_+2)}, {v(T_)}
        v_cmp_ne_u32 vcc, 0, {v(T_)}
        s_nop 3
        """)
    DS.issue(f"ds_read_b128 {v(SELA,4)}, {v(L16)} offset:{LDS_C}", "sel")
    for f in list(PRE)[3:]: wld(f)
    delay(max(0, d1 - stag - 70))
    A(f"s_cmp_lt_u32 {W}, 2\ns_cbranch_scc1 {lab}_p1s")
    delay(stag)
    A(f"{lab}_p1s:")
    ld1(PL, PL+4)
    A(f"v_mov_b32 {v(T_+1)}, s{sSENT}\nv_cndmask_b32 {v(T_+2)}, 0, 1, {sp(sM1)}")
    for q in range(0, 16, 2): A(f"v_mov_b64 {v(DA+q,2)}, 0")
    delay(g1 - 40); ld1(PB0, PB1)
    DS.wait("sel")
    chk1(PL, PL+4)
    A(f"""
    s_cbranch_vccnz {lab}_p1retry
    {lab}_p1ok:
    v_add_f32_dpp {v(RD)}, {v(RD)}, {v(RD)} row_ror:8 row_mask:0xf bank_mask:0xf
    v_add_f32_dpp {v(RD+1)}, {v(RD+1)}, {v(RD+1)} row_ror:8 row_mask:0xf bank_mask:0xf
    v_add_f32_dpp {v(RD)}, {v(RD)}, {v(RD)} row_ror:4 row_mask:0xf bank_mask:0xf
    v_add_f32_dpp {v(RD+1)}, {v(RD+1)}, {v(RD+1)} row_ror:4 row_mask:0xf bank_mask:0xf
    s_mov_b64 exec, {sp(sM4)}
    v_cvt_pk_bf16_f32 {v(PVA+1)}, {v(RD)}, {v(RD+1)}
    global_store_dword {v(AM)}, {v(PVA+1)}, {sp(sMS)} {st}
    global_store_dword {v(AM)}, {v(T_+1)}, {sp(sMR)} {st}
    s_mov_b64 exec, -1
    s_xor_b32 s{S_PAR}, s{S_PAR}, 1
    s_add_u32 s{sSTEP}, s{sSTEP}, 1
    """)
    sbase(A, sMH, sMH, 0x2000)
    A(f"s_cmp_lt_u32 s{sSTEP}, 63\ns_cbranch_scc0 {lab}_fin")
    for f in list(PRE)[:3]: wld(f)
    A(f"s_lshl_b32 s20, {W}, 11")
    sbase(A, sML, sMS, 0, 20)
    A(f"v_cmp_ge_u32 vcc, s{S_L}, {v(SP2)}\ns_cbranch_vccnz {lab}_kvwait\n{lab}_kvok:")
    delay(max(0, d2 - 120))
    dma()
    mbases()
    sbase(A, sTCH, sTCH, 0x80000)
    A(f"s_cmp_lt_u32 s{sSTEP}, 62\ns_cselect_b32 s20, 4, 0\ns_mov_b64 {sp(sPUB)}, {sp(sM4)}")
    sbase(A, sFL, sFL, 0, 20)
    delay(g2 - 48)
    dma()
    A(f"s_waitcnt lgkmcnt(0)\ns_branch {lab}_top")
    A(f"{lab}_kvwait:\nglobal_load_dword {v(SP2)}, {v(PVA)}, {sp(sFL)} sc1")
    spin_guard(A)
    A(f"s_waitcnt vmcnt(0)\nv_cmp_ge_u32 vcc, s{S_L}, {v(SP2)}\ns_cbranch_vccz {lab}_kvok\ns_sleep 1\ns_branch {lab}_kvwait")
    A(f"{lab}_p1retry:")
    ld1(PL, PL+4)
    chk1(PB0, PB1)
    A(f"s_cbranch_vccz {lab}_p1ok")
    ld1(PB0, PB1)
    spin_guard(A)
    chk1(PL, PL+4)
    A(f"s_cbranch_vccz {lab}_p1ok\ns_branch {lab}_p1retry")
    A(f"{lab}_p2retry:")
    dma()
    spin_guard(A)
    for q in range(0, 8, 2): A(f"v_mov_b64 {v(DA+q,2)}, 0")
    A(f"s_waitcnt lgkmcnt(0)\ns_branch {lab}_top")
    A(f"""
    {lab}_slowmax:
    v_max3_f32 {v(SR+5)}, {v(SR)}, {v(SR+1)}, {v(SR+2)}
    v_max3_f32 {v(SR+5)}, {v(SR+3)}, {v(SR+4)}, {v(SR+5)}
    v_max_f32_dpp {v(SR+5)}, {v(SR+5)}, {v(SR+5)} row_ror:8 row_mask:0xf bank_mask:0xf
    v_mov_b32 {v(E)}, {v(SR+5)}
    v_permlane16_swap_b32 {v(SR+5)}, {v(E)}
    v_max_f32 {v(SR+5)}, {v(SR+5)}, {v(E)}
    v_mov_b32 {v(E)}, {v(SR+5)}
    v_permlane32_swap_b32 {v(SR+5)}, {v(E)}
    v_max_f32 {v(SR+5)}, {v(SR+5)}, {v(E)}
    s_waitcnt lgkmcnt(0)
    v_mov_b32 {v(P)}, 0
    """)
    for q in range(5): A(f"v_sub_f32 {v(SR+q)}, {v(SR+q)}, {v(SR+5)}")
    exps()
    pv(False)
    A(f"ds_write_b64 {v(OWA)}, {v(OA,2)} offset:{LDS_O}\ns_branch {lab}_maxdone")
    A(f"""
    {lab}_fin:
    s_mov_b64 exec, {sp(sM4)}
    global_store_dword {v(AM)}, {v(PVA+1)}, {sp(sMH)} sc1
    s_mov_b64 exec, -1
    s_waitcnt vmcnt(0) lgkmcnt(0)
    v_lshrrev_b32 v0, 4, {v(L16)}
    s_barrier
    """)
```

```python
from common import *
from fft import RowDFT, lane_consts

def gbar(A, st, lab, t0=126, t1=127):
    A(f"""
    s_add_u32 s{S_EP}, s{S_EP}, 1
    s_waitcnt vmcnt(0)
    s_barrier
    s_cmp_eq_u32 s{S_W}, 0
    s_cbranch_scc0 {lab}_d
    s_lshl_b32 s22, s{S_G}, 8
    """)
    sbase(A, 20, S_WS, WS_GB, 22)
    A(f"""
    v_mov_b32 {v(t1)}, s{S_EP}
    v_and_b32 {v(t0)}, 31, v0
    v_lshlrev_b32 {v(t0)}, 2, {v(t0)}
    v_cmp_eq_u32 vcc, s{S_H}, v0
    s_mov_b64 exec, vcc
    global_store_dword {v(t0)}, {v(t1)}, s[20:21] {st}
    s_mov_b64 exec, -1
    s_mov_b32 s{S_TO}, 0
    {lab}_p:
    global_load_dword {v(t1)}, {v(t0)}, s[20:21] sc1
    """)
    spin_guard(A)
    A(f"""
    s_waitcnt vmcnt(0)
    v_cmp_gt_u32 vcc, s{S_EP}, {v(t1)}
    s_cbranch_vccnz {lab}_p
    {lab}_d:
    s_barrier
    """)

def post_flag(A, off, sidx, lab, t0=126, t1=127):
    A(f"s_waitcnt vmcnt(0)\ns_barrier\ns_cmp_eq_u32 s{S_W}, 0\ns_cbranch_scc0 {lab}\ns_lshl_b32 s22, s{sidx}, 2")
    sbase(A, 20, S_WS, off, 22)
    A(f"""
    s_add_u32 s22, s{S_L}, 1
    v_mov_b32 {v(t0)}, 0
    v_mov_b32 {v(t1)}, s22
    s_mov_b64 exec, 1
    global_store_dword {v(t0)}, {v(t1)}, s[20:21] sc1
    s_mov_b64 exec, -1
    {lab}:
    """)

IDX, IDB, L16, MW, MR1, MR2, MR3, RR0, RR1, RR2, RR3, VWA = 1, 2, 4, 5, 6, 7, 8, 9, 10, 11, 12, 13
def mem_consts(A, t):
    A(f"""
    v_lshlrev_b32 {v(L16)}, 4, v0
    v_mov_b32 {v(t)}, 0x4444
    v_mov_b32 {v(t+1)}, 0xeeee
    s_mov_b32 s20, 0xff00ff00
    s_mov_b32 s21, 0xff00ff00
    v_cndmask_b32 {v(IDX)}, {v(t)}, {v(t+1)}, s[20:21]
    s_lshl_b32 s20, s{S_W}, 15
    s_add_u32 s20, s20, {LDS_WV}
    v_add_u32 {v(VWA)}, s20, {v(L16)}
    """)
    for c, (m_, r_) in enumerate(((MW, RR0), (MR1, RR1), (MR2, RR2), (MR3, RR3))):
        A(f"s_add_u32 s20, s{S_W}, {c}\ns_and_b32 s20, s20, 3\ns_lshl_b32 s20, s20, 11\nv_add_u32 {v(m_)}, s20, {v(L16)}\nv_xor_b32 {v(r_)}, 0x80, {v(m_)}")
def onehot(A, dst, nreg, val, t, first=0):
    A(f"v_mov_b32 {v(t)}, 0x3f80\nv_mov_b32 {v(t+1)}, 0x3f800000")
    for q in range(nreg):
        A(f"v_cmp_eq_u32 vcc, {first+2*q}, {v(val)}\nv_cndmask_b32 {v(dst+q)}, 0, {v(t)}, vcc\nv_cmp_eq_u32 vcc, {first+2*q+1}, {v(val)}\nv_cndmask_b32 {v(dst+q)}, {v(dst+q)}, {v(t+1)}, vcc")

S_SEG = 36
def front(A, st, lab):
    L, AZ, AWR, ARD, AX = 1, 2, 3, 4, 5
    FI, Z, D, R, X0 = 8, 24, 56, 64, 72
    n, g, t = 76, 77, 78
    lane_consts(A, 0, n, g)
    A(f"""
    v_lshlrev_b32 {v(L)}, 4, v0
    s_lshl_b32 s{S_T0}, s{S_H}, 14
    s_lshl_b32 s{S_T1}, s{S_W}, 12
    s_add_u32 s{S_T0}, s{S_T0}, s{S_T1}
    """)
    sbase(A, 20, S_WS, WS_FI, S_T0)
    for j in range(4): A(f"global_load_dwordx4 {v(FI+4*j,4)}, {v(L)}, s[20:21] offset:{1024*j}")
    A(f"""
    v_lshlrev_b32 {v(AZ)}, 15, {v(g)}
    v_lshl_add_u32 {v(AZ)}, {v(n)}, 2, {v(AZ)}
    s_lshl_b32 s{S_T0}, s{S_L}, 21
    s_lshl_b32 s{S_T1}, s{S_W}, 19
    s_add_u32 s{S_T1}, s{S_T1}, s{S_T0}
    s_lshl_b32 s{S_T2}, s{S_SEG}, 7
    s_add_u32 s{S_T1}, s{S_T1}, s{S_T2}
    """)
    sbase(A, 20, S_WS, WS_Y2, S_T1)
    for j in range(4):
        for q in range(4):
            for tt in range(2):
                A(f"global_load_dword {v(Z+16*tt+4*j+q)}, {v(AZ)}, s[20:21] offset:{64*tt} sc1")
            if (j, q) != (3, 3): sbase(A, 20, 20, 8192 if q < 3 else 13*8192)
    A(f"""
    ; row (8w + l>>3)*1024 + c*32 + (l&7)*4
    v_lshrrev_b32 {v(t)}, 3, v0
    v_lshlrev_b32 {v(AX)}, 10, {v(t)}
    v_and_b32 {v(t+1)}, 7, v0
    v_lshl_add_u32 {v(AX)}, {v(t+1)}, 2, {v(AX)}
    s_lshl_b32 s{S_T1}, s{S_SEG}, 15
    s_lshl_b32 s{S_T2}, s{S_W}, 13
    s_add_u32 s{S_T1}, s{S_T1}, s{S_T2}
    s_lshl_b32 s{S_T2}, s{S_H}, 5
    s_add_u32 s{S_T2}, s{S_T1}, s{S_T2}
    """)
    sbase(A, 22, S_WS, WS_X2)
    A(f"s_cmp_eq_u32 s{S_L}, 0\ns_cselect_b32 s22, s{S_X}, s22\ns_cselect_b32 s23, s{S_X+1}, s23")
    sbase(A, 22, 22, 0, S_T2)
    A(f"global_load_dword {v(X0)}, {v(AX)}, s[22:23] sc1")
    A(f"s_add_u32 s{S_T2}, s{S_T2}, s{S_T0}\ns_add_u32 s{S_T1}, s{S_T1}, s{S_T0}")
    sbase(A, 22, S_WS, WS_X1, S_T2); sbase(A, 24, S_WS, WS_X1, S_T1)
    A(f"""
    s_lshl_b32 s{S_T0}, s{S_W}, 11
    v_add_u32 {v(AWR)}, s{S_T0}, {v(L)}
    v_lshrrev_b32 {v(ARD)}, 1, {v(t+1)}
    v_lshl_add_u32 {v(ARD)}, {v(ARD)}, 4, {v(t)}
    v_lshlrev_b32 {v(ARD)}, 4, {v(ARD)}
    v_and_b32 {v(t+1)}, 1, v0
    v_lshl_add_u32 {v(ARD)}, {v(t+1)}, 3, {v(ARD)}
    s_lshr_b32 s{S_T0}, s{S_W}, 1
    s_lshl_b32 s{S_T0}, s{S_T0}, 10
    s_and_b32 s{S_T2}, s{S_W}, 1
    s_lshl_b32 s{S_T2}, s{S_T2}, 7
    s_add_u32 s{S_T0}, s{S_T0}, s{S_T2}
    v_add_u32 {v(ARD)}, s{S_T0}, {v(ARD)}
    """)
    for j in range(4):
        A(f"s_waitcnt vmcnt({8*(3-j)+1})")
        for tt in range(2): mf32(A, D+4*tt, FI+4*j, Z+16*tt+4*j, D+4*tt if j else None)
    A(f"ds_write_b128 {v(AWR)}, {v(D,4)}\nds_write_b128 {v(AWR)}, {v(D+4,4)} offset:1024\ns_waitcnt lgkmcnt(0)\ns_barrier")
    for k in range(4): A(f"ds_read_b64 {v(R+2*k,2)}, {v(ARD)} offset:{2048*k}")
    A(f"""
    s_waitcnt vmcnt(0) lgkmcnt(0)
    v_pk_add_f32 {v(R,2)}, {v(R,2)}, {v(R+2,2)}
    v_pk_add_f32 {v(R+4,2)}, {v(R+4,2)}, {v(R+6,2)}
    v_pk_add_f32 {v(R,2)}, {v(R,2)}, {v(R+4,2)}
    v_cvt_pk_bf16_f32 {v(R)}, {v(R)}, {v(R+1)}
    v_lshlrev_b32 {v(R+2)}, 16, {v(R)}
    v_and_b32 {v(R+3)}, 0xffff0000, {v(R)}
    v_lshlrev_b32 {v(R+4)}, 16, {v(X0)}
    v_and_b32 {v(R+5)}, 0xffff0000, {v(X0)}
    v_pk_add_f32 {v(R+2,2)}, {v(R+2,2)}, {v(R+4,2)}
    v_cvt_pk_bf16_f32 {v(R)}, {v(R+2)}, {v(R+3)}
    global_store_dword {v(AX)}, {v(R)}, s[22:23] {st}
    """)
    mem_consts(A, 20)
    XA = 14
    A(f"""
    v_and_b32 v20, 7, v0
    v_lshlrev_b32 {v(XA)}, 10, v20
    v_lshrrev_b32 v20, 3, v0
    v_lshl_add_u32 {v(XA)}, v20, 4, {v(XA)}
    """)
    gbar(A, st, lab + "_g1")
    X, S1, S2, ONE, T = 80, 112, 113, 114, 116
    for k in range(8): A(f"global_load_dwordx4 {v(X+4*k,4)}, {v(XA)}, s[24:25] offset:{128*k} sc1")
    ACC = 16
    acc = lambda kind, gam: ACC + 16*kind + 4*gam
    for q in range(0, 64, 2): A(f"v_mov_b64 {v(ACC+q,2)}, 0")
    A(f"v_mov_b32 {v(S1)}, 0\nv_mov_b32 {v(S2)}, 0\nv_mov_b32 {v(ONE)}, 0x3f803f80\ns_lshl_b32 s20, s{S_W}, 13\nv_add_u32 {v(XA)}, s20, {v(L16)}")
    for k in range(8):
        A(f"s_waitcnt vmcnt({7-k})")
        for q in range(4): A(f"v_dot2c_f32_bf16 {v(S1)}, {v(X+4*k+q)}, {v(ONE)}\nv_dot2c_f32_bf16 {v(S2)}, {v(X+4*k+q)}, {v(X+4*k+q)}")
    for s_ in (S1, S2):
        A(f"""
        v_add_f32_dpp {v(s_)}, {v(s_)}, {v(s_)} row_ror:8 row_mask:0xf bank_mask:0xf
        v_mov_b32 {v(T)}, {v(s_)}
        v_permlane16_swap_b32 {v(s_)}, {v(T)}
        v_add_f32 {v(s_)}, {v(s_)}, {v(T)}
        v_mov_b32 {v(T)}, {v(s_)}
        v_permlane32_swap_b32 {v(s_)}, {v(T)}
        v_add_f32 {v(s_)}, {v(s_)}, {v(T)}
        """)
    A(f"""
    v_mul_f32 {v(S1)}, {fbits(1/512):#x}, {v(S1)}
    v_mul_f32 {v(S2)}, {fbits(1/512):#x}, {v(S2)}
    v_fma_f32 {v(S2)}, -{v(S1)}, {v(S1)}, {v(S2)}
    v_max_f32 {v(S2)}, 0, {v(S2)}
    v_add_f32 {v(S2)}, {fbits(1e-5):#x}, {v(S2)}
    v_rsq_f32 {v(S2)}, {v(S2)}
    v_mul_f32 {v(S1)}, -{v(S1)}, {v(S2)}
    """)
    for k in range(8):
        for q in range(4):
            x = X + 4*k + q
            A(f"v_lshlrev_b32 {v(T)}, 16, {v(x)}\nv_and_b32 {v(T+1)}, 0xffff0000, {v(x)}")
            A(f"v_pk_fma_f32 {v(T,2)}, {v(T,2)}, {v(S1,2)}, {v(S1,2)} op_sel:[0,1,0] op_sel_hi:[1,1,0]")
            cvt(A, x, T, T+1)
        A(f"ds_write_b128 {v(XA)}, {v(X+4*k,4)} offset:{1024*k}")
    A("s_waitcnt lgkmcnt(0)\ns_barrier")
    XS, RS, WB = 80, 96, 112
    DS = Ctr(A, "lgkmcnt", 15)
    uses = []
    for rho in range(8):
        uses += [("qk", rho, 0, 0), ("qk", rho, 0, 1), ("v", rho, 0), ("v", rho, 1), ("qk", rho, 1, 0), ("qk", rho, 1, 1)]
    lq = [f for f in uses if f in LDS_SET]
    buf = {f: WB + 8*(i & 1) for i, f in enumerate(lq)}
    def wld(f):
        for hf in range(2): DS.issue(f"ds_read_b128 {v(buf[f]+4*hf,4)}, {v(VWA)} offset:{wslot(f)+1024*hf}", f)
    xrd = lambda rho, gam: DS.issue(f"ds_read_b128 {v(XS+4*gam,4)}, {v((MW, MR1, MR2, MR3)[rho//2])} offset:{8192*gam + (rho & 1)*1024}", ("x", rho, gam))
    rrd = lambda rho, gam: DS.issue(f"ds_read_b128 {v(RS+4*gam,4)}, {v((RR0, RR1, RR2, RR3)[rho//2])} offset:{8192*gam + (rho & 1)*1024}", ("r", rho, gam))
    wld(lq[0])
    for gam in range(4): xrd(0, gam)
    wld(lq[1]); nl = 2
    for k, f in enumerate(uses):
        rho = f[1]; rot = f[0] == "qk" and f[2]
        kind = f[3] if f[0] == "qk" else 2 + f[2]
        for gam in range(4):
            DS.wait(f, ("r" if rot else "x", rho, gam))
            smf(A, acc(kind, gam), (RS if rot else XS) + 4*gam, buf[f] if f in buf else wres(f), IDX)
            if k % 6 == 1: rrd(rho, gam)
            if k % 6 == 3 and rho < 7: xrd(rho+1, gam)
        if f in buf and nl < len(lq):
            wld(lq[nl]); nl += 1
    SQ, SK, TA, TD, OUT = 80, 84, 88, 92, 100
    n, g, t = 124, 125, 126
    lane_consts(A, 0, n, g)
    A(f"""
    v_lshlrev_b32 {v(TA)}, 2, {v(g)}
    v_sub_u32 {v(TA)}, {v(n)}, {v(TA)}
    v_cmp_gt_u32 vcc, 2, {v(g)}
    v_cndmask_b32 {v(TA+1)}, 64, {v(TA)}, vcc
    v_add_u32 {v(TA)}, 8, {v(TA)}
    v_cndmask_b32 {v(TA+2)}, {v(TA)}, 64, vcc
    """)
    onehot(A, SQ, 2, TA+1, t, 0); onehot(A, SQ+2, 2, TA+1, t, 8)
    onehot(A, SK, 2, TA+2, t, 0); onehot(A, SK+2, 2, TA+2, t, 8)
    for tt in range(2):
        for tau in range(2):
            a0, a1 = acc(tau, 2*tt), acc(tau, 2*tt+1)
            cvt(A, TA, a0, a0+1); cvt(A, TA+1, a0+2, a0+3); cvt(A, TA+2, a1, a1+1); cvt(A, TA+3, a1+2, a1+3)
            mf32(A, a0, TA, SQ); mf32(A, a1, TA, SK)
    for tau in range(2):
        for S in range(2):
            a0, a1 = acc(2+tau, 2*S), acc(2+tau, 2*S+1)
            for i in range(4): A(f"v_permlane32_swap_b32 {v(a0+i)}, {v(a1+i)}")
            A(f"v_pk_add_f32 {v(a0,2)}, {v(a0,2)}, {v(a1,2)}\nv_pk_add_f32 {v(a0+2,2)}, {v(a0+2,2)}, {v(a1+2,2)}")
            cvt(A, OUT+16+4*tau+2*S, a0, a0+1); cvt(A, OUT+16+4*tau+2*S+1, a0+2, a0+3)
    for tt in range(2):
        for tau in range(2):
            a0, a1 = acc(tau, 2*tt), acc(tau, 2*tt+1)
            cvt(A, OUT+4*tt+2*tau, a0, a0+1); cvt(A, OUT+4*tt+2*tau+1, a0+2, a0+3)
            cvt(A, OUT+8+4*tt+2*tau, a1, a1+1); cvt(A, OUT+8+4*tt+2*tau+1, a1+2, a1+3)
    kvq_bases(A)
    for q in range(4): A(f"global_store_dwordx4 {v(L16)}, {v(OUT+8+4*q,4)}, s[24:25] offset:{1024*q} sc1")
    for q in range(2): A(f"global_store_dwordx4 {v(L16)}, {v(OUT+4*q,4)}, s[26:27] offset:{1024*q}")
    A(f"s_lshl_b32 s{S_T0}, s{S_H}, 6\ns_add_u32 s{S_T0}, s{S_T0}, s{S_SEG}")
    post_flag(A, WS_KVF, S_T0, lab + "_f")

def kvq_bases(A):
    A(f"""
    s_lshl_b32 s{S_T0}, s{S_SEG}, 5
    s_add_u32 s{S_T0}, s{S_T0}, s{S_H}
    s_lshl_b32 s{S_T0}, s{S_T0}, 2
    s_add_u32 s{S_T0}, s{S_T0}, s{S_W}
    s_lshl_b32 s{S_T1}, s{S_T0}, 11
    s_lshl_b32 s{S_T0}, s{S_T0}, 12
    s_mul_i32 s{S_T2}, s{S_L}, {KV_LAYER:#x}
    s_add_u32 s{S_T0}, s{S_T0}, s{S_T2}
    """)
    sbase(A, 24, S_WS, WS_KV, S_T0); sbase(A, 26, S_WS, WS_Q, S_T1)

S_PB = 37
def back(A, st, lab):
    OWA, OWB, OR1, OR2, OR3, OWR = 14, 15, 16, 17, 18, 19
    Q, K, VX = 20, 28, 36
    TS = 44
    T00, TM0, T01, T11, TM1 = TS, TS+4, TS+8, TS+12, TS+16
    DA, DB, DVA, DVB = 64, 68, 72, 76
    XF, RF, WB = 80, 88, 96
    n, g, t = 120, 121, 122
    LS = 8192
    tile_off = lambda k: LS + 8192*(k >> 1) + 1024*(k & 1)
    mem_consts(A, t)
    kvq_bases(A)
    for q in range(2): A(f"global_load_dwordx4 {v(Q+4*q,4)}, {v(L16)}, s[26:27] offset:{1024*q} sc1")
    for q in range(4): A(f"global_load_dwordx4 {v(K+4*q,4)}, {v(L16)}, s[24:25] offset:{1024*q} sc1")
    lane_consts(A, 0, n, g)
    A(f"v_lshlrev_b32 {v(t+2)}, 2, {v(g)}\nv_sub_u32 {v(t+2)}, {v(n)}, {v(t+2)}")
    onehot(A, IDB, 2, t+2, t)
    for i in range(4): A(f"v_cmp_le_i32 s[{40+2*i}:{41+2*i}], {i}, {v(t+2)}")
    A(f"""
    s_mov_b32 s48, 0
    s_mov_b32 s49, -1
    v_and_b32 {v(t)}, 7, v0
    v_lshlrev_b32 {v(t)}, 4, {v(t)}
    v_lshl_add_u32 {v(t)}, {v(g)}, 7, {v(t)}          ; OB
    v_lshrrev_b32 {v(t+1)}, 3, {v(n)}                 ; hh
    s_lshl_b32 s20, s{S_W}, 9
    v_add_u32 {v(OWR)}, s20, {v(t)}
    v_lshl_add_u32 {v(OWA)}, {v(t+1)}, 3, {v(OWR)}
    v_xor_b32 {v(OWB)}, 8, {v(OWA)}
    v_lshl_add_u32 {v(OWR)}, {v(t+1)}, 11, {v(OWR)}
    """)
    for c, reg in ((1, OR1), (2, OR2), (3, OR3)):
        A(f"s_add_u32 s20, s{S_W}, {c}\ns_and_b32 s20, s20, 3\ns_lshl_b32 s20, s20, 9\nv_add_u32 {v(reg)}, s20, {v(t)}")
    for q in range(0, 16, 2): A(f"v_mov_b64 {v(DA+q,2)}, 0")
    A("s_waitcnt vmcnt(2)")
    mf32(A, T00, K, Q); mf32(A, T01, K, Q+4); mf32(A, T11, K+4, Q+4)
    for k, T_ in ((0, T00), (2, T01), (3, T11)): A(f"ds_write_b128 {v(MW)}, {v(T_,4)} offset:{tile_off(k)}")
    DS = Ctr(A, "lgkmcnt", 15)
    uses = []
    for rho in range(8):
        uses += [("qk", rho, 0, 0), ("qk", rho, 0, 1), ("v", rho, 0), ("v", rho, 1), ("qk", rho, 1, 0), ("qk", rho, 1, 1)]
    lq = [f for f in uses if f in LDS_SET] + [("o", 0, 0), ("o", 0, 1), ("o", 0, 2)]
    buf = {f: WB + 8*(i % 3) for i, f in enumerate(lq)}
    def wld(f):
        for hf in range(2): DS.issue(f"ds_read_b128 {v(buf[f]+4*hf,4)}, {v(VWA)} offset:{wslot(f)+1024*hf}", f)
    for f in lq[:3]: wld(f)
    A(f"""
    s_lshl_b32 s{S_T0}, s{S_L}, 6
    s_add_u32 s{S_T0}, s{S_T0}, s{S_SEG}
    s_lshl_b32 s{S_T0}, s{S_T0}, 13
    s_lshl_b32 s{S_T1}, s{S_W}, 11
    s_add_u32 s{S_T0}, s{S_T0}, s{S_T1}
    s_mov_b32 m0, s{S_T1}
    s_mov_b32 s{S_T2}, {SENT:#x}
    s_mov_b32 s{S_TO}, 0
    """)
    sbase(A, 20, S_WS, WS_MH, S_T0)
    A(f"""
    {lab}_mp:
    global_load_lds_dwordx4 {v(L16)}, s[20:21] sc1
    global_load_lds_dwordx4 {v(L16)}, s[20:21] offset:1024 sc1
    """)
    spin_guard(A)
    A(f"""
    s_waitcnt vmcnt(0)
    ds_read_b128 {v(XF,4)}, {v(MW)}
    ds_read_b128 {v(XF+4,4)}, {v(MW)} offset:1024
    s_waitcnt lgkmcnt(0)
    v_cmp_eq_u32 vcc, s{S_T2}, {v(XF)}
    v_cmp_eq_u32 s[22:23], s{S_T2}, {v(XF+4)}
    s_or_b64 vcc, vcc, s[22:23]
    s_cbranch_scc0 {lab}_mo
    s_sleep 4
    s_branch {lab}_mp
    {lab}_mo:
    s_barrier
    """)
    DS.assume([])
    xrd = lambda rho: DS.issue(f"ds_read_b128 {v(XF+4*(rho & 1),4)}, {v((MW, MR1, MR2, MR3)[rho//2])} offset:{(rho & 1)*1024}", ("x", rho))
    rrd = lambda rho: DS.issue(f"ds_read_b128 {v(RF+4*(rho & 1),4)}, {v((RR0, RR1, RR2, RR3)[rho//2])} offset:{(rho & 1)*1024}", ("r", rho))
    rrd(0); rrd(1); nl = 3
    for k, f in enumerate(uses):
        rho = f[1]; rot = f[0] == "qk" and f[2]
        d = (DB if f[3] else DA) if f[0] == "qk" else (DVB if f[2] else DVA)
        DS.wait(f, ("r" if rot else "x", rho))
        smf(A, d, (RF if rot else XF) + 4*(rho & 1), buf[f] if f in buf else wres(f), IDX)
        if k % 6 == 3 and rho < 6: xrd(rho+2)
        if k % 6 == 5 and rho < 6: rrd(rho+2)
        if f in buf and nl < len(lq):
            wld(lq[nl]); nl += 1
    X = XF; D2 = RF
    cvt(A, DA, DA, DA+1); cvt(A, DA+1, DA+2, DA+3); mf16(A, D2, DA, IDB)
    cvt(A, DB, DB, DB+1); cvt(A, DB+1, DB+2, DB+3); mf16(A, D2+4, DB, IDB)
    VM = K
    for tau, D in enumerate((DVA, DVB)):
        for i in range(4):
            A(f"v_mov_b32 {v(t)}, {v(D+i)}\nv_permlane32_swap_b32 {v(t)}, {v(D+i)}\nv_add_f32 {v(D+i)}, {v(D+i)}, {v(t)}")
        cvt(A, VM+2*tau, D, D+1); cvt(A, VM+2*tau+1, D+2, D+3)
    for q in range(4): cvt(A, X+q, D2+2*q, D2+2*q+1)
    mf32(A, TM0, X, Q); mf32(A, TM1, X, Q+4)
    ONES = K + 4
    for q in range(4): A(f"v_mov_b32 {v(ONES+q)}, 0x3f803f80")
    DS.issue(f"ds_write_b128 {v(MW)}, {v(TM0,4)} offset:{tile_off(1)}\nds_write_b128 {v(MW)}, {v(TM1,4)} offset:{tile_off(4)}", "w")
    DS.drain(); A("s_barrier")
    RB = 64
    seq = [(k, c) for k in range(5) for c in range(3)]
    rd = lambda i: DS.issue(f"ds_read_b128 {v(RB+4*(i & 7),4)}, {v((MR1, MR2, MR3)[seq[i][1]])} offset:{tile_off(seq[i][0])}", i)
    for i in range(8): rd(i)
    for i, (k, c) in enumerate(seq):
        DS.wait(i)
        A(f"v_pk_add_f32 {v(TS+4*k,2)}, {v(TS+4*k,2)}, {v(RB+4*(i & 7),2)}\nv_pk_add_f32 {v(TS+4*k+2,2)}, {v(TS+4*k+2,2)}, {v(RB+4*(i & 7)+2,2)}")
        if i + 8 < 15: rd(i+8)
    NEG, M0, M1 = t, t+1, t+2
    A(f"v_mov_b32 {v(NEG)}, 0xff7fffff\ns_mov_b32 s{S_T0}, {fbits(C_SCALE):#x}")
    for i in range(4):
        for T_ in (T00, T11): A(f"v_cndmask_b32 {v(T_+i)}, {v(NEG)}, {v(T_+i)}, s[{40+2*i}:{41+2*i}]")
        for T_ in (TM0, TM1): A(f"v_cndmask_b32 {v(T_+i)}, {v(NEG)}, {v(T_+i)}, s[48:49]")
    for M, lo, cnt in ((M0, TS, 8), (M1, TS+8, 12)):
        A(f"v_max_f32 {v(M)}, {v(lo)}, {v(lo+1)}")
        for q in range(2, cnt, 2): A(f"v_max3_f32 {v(M)}, {v(lo+q)}, {v(lo+q+1)}, {v(M)}")
        for sw in ("16", "32"):
            A(f"v_mov_b32 {v(t+3)}, {v(M)}\nv_permlane{sw}_swap_b32 {v(M)}, {v(t+3)}\nv_max_f32 {v(M)}, {v(M)}, {v(t+3)}")
        for q in range(cnt): A(f"v_sub_f32 {v(lo+q)}, {v(lo+q)}, {v(M)}\nv_mul_f32 {v(lo+q)}, s{S_T0}, {v(lo+q)}\nv_exp_f32 {v(lo+q)}, {v(lo+q)}")
    PX0, PX1, PM0, PM1 = 64, 68, 72, 74
    cvt(A, PX0, T00, T00+1); cvt(A, PX0+1, T00+2, T00+3); A(f"v_mov_b64 {v(PX0+2,2)}, 0")
    cvt(A, PX1, T01, T01+1); cvt(A, PX1+1, T01+2, T01+3); cvt(A, PX1+2, T11, T11+1); cvt(A, PX1+3, T11+2, T11+3)
    cvt(A, PM0, TM0, TM0+1); cvt(A, PM0+1, TM0+2, TM0+3); cvt(A, PM1, TM1, TM1+1); cvt(A, PM1+1, TM1+2, TM1+3)
    Lr, O = 76, 44
    for qt, (px, pm) in enumerate(((PX0, PM0), (PX1, PM1))):
        mf32(A, Lr+4*qt, ONES, px)
        for tau in range(2): mf32(A, O+8*qt+4*tau, VX+4*tau, px)
        mf16(A, Lr+4*qt, ONES, pm, Lr+4*qt)
        for tau in range(2): mf16(A, O+8*qt+4*tau, VM+2*tau, pm, O+8*qt+4*tau)
    for qt in range(2):
        A(f"v_rcp_f32 {v(Lr+4*qt)}, {v(Lr+4*qt)}")
        for q in range(0, 8, 2): A(f"v_pk_mul_f32 {v(O+8*qt+q,2)}, {v(O+8*qt+q,2)}, {v(Lr+4*qt,2)} op_sel_hi:[1,0]")
        for q in range(4): cvt(A, O+8*qt+q, O+8*qt+2*q, O+8*qt+2*q+1)
        DS.issue(f"ds_write_b128 {v(OWR)}, {v(O+8*qt,4)} offset:{4096*qt}", "w")
    APST = 120
    A(f"""
    v_lshrrev_b32 {v(t)}, 5, v0
    v_lshlrev_b32 {v(t)}, 3, {v(t)}
    v_bfe_u32 {v(t+1)}, v0, 2, 2
    v_lshl_add_u32 {v(t)}, {v(t+1)}, 1, {v(t)}
    v_bfe_u32 {v(t+1)}, v0, 4, 1
    v_add_u32 {v(t)}, {v(t)}, {v(t+1)}
    v_lshlrev_b32 {v(t)}, 11, {v(t)}
    v_and_b32 {v(t+1)}, 3, v0
    v_lshl_add_u32 {v(APST)}, {v(t+1)}, 4, {v(t)}
    s_lshl_b32 s{S_T0}, s{S_G}, 21
    s_add_u32 s{S_T0}, s{S_T0}, s{S_PB}
    s_lshl_b32 s{S_T1}, s{S_W}, 15
    s_lshl_b32 s{S_T2}, s{S_H}, 6
    s_add_u32 s{S_T1}, s{S_T1}, s{S_T2}
    """)
    sbase(A, 28, S_WS, WS_PW, S_T0); sbase(A, 24, 28, 0, S_T1)
    DS.drain(); A("s_barrier")
    OAb, OCb = (20, 36), (60, 76)
    def oread(gam):
        oa = OAb[gam & 1]
        DS.issue(f"ds_read_b64 {v(oa,2)}, {v(OWA)} offset:{2048*gam}\nds_read_b64 {v(oa+2,2)}, {v(OWB)} offset:{2048*gam}", ("oa", gam, 0))
        for c in (1, 2, 3): DS.issue(f"ds_read_b128 {v(oa+4*c,4)}, {v((OR1, OR2, OR3)[c-1])} offset:{2048*gam}", ("oa", gam, c))
    def ostore(gam):
        oc = OCb[gam & 1]
        for J in range(2):
            a_ = oc + 8*J
            cvt(A, a_, a_, a_+1); cvt(A, a_+1, a_+2, a_+3); cvt(A, a_+2, a_+4, a_+5); cvt(A, a_+3, a_+6, a_+7)
            A(f"global_store_dwordx4 {v(APST)}, {v(a_,4)}, s[24:25] {st}")
            sbase(A, 24, 24, 0x20000)
    oread(0)
    for gam in range(4):
        oa, oc = OAb[gam & 1], OCb[gam & 1]
        for q in range(0, 16, 2): A(f"v_mov_b64 {v(oc+q,2)}, 0")
        if gam < 3: oread(gam+1)
        for c in range(4):
            DS.wait(("oa", gam, c))
            for j in range(4):
                f = ("o", c, j)
                smf(A, oc+4*j, oa+4*c, buf[f] if f in buf else wres(f), IDX)
            if c == 0 and gam > 0: ostore(gam-1)
    ostore(3)
    SELA, AXO, X1r, PL, RD, RES = 20, 24, 25, 28, 64, 80
    n, g = 26, 27
    lane_consts(A, 0, n, g)
    A(f"v_and_b32 {v(t)}, 3, {v(n)}\nv_lshlrev_b32 {v(t)}, 2, {v(t)}\nv_lshrrev_b32 {v(t+1)}, 2, {v(n)}\nv_add_u32 {v(t+2)}, {v(t)}, {v(t+1)}")
    onehot(A, SELA, 4, t+2, t)
    A(f"""
    v_lshlrev_b32 {v(AXO)}, 10, {v(g)}
    v_lshl_add_u32 {v(AXO)}, {v(n)}, 2, {v(AXO)}
    s_lshl_b32 s{S_T0}, s{S_SEG}, 15
    s_lshr_b32 s{S_T1}, s{S_H}, 2
    s_lshl_b32 s{S_T1}, s{S_T1}, 12
    s_add_u32 s{S_T0}, s{S_T0}, s{S_T1}
    s_and_b32 s{S_T1}, s{S_H}, 3
    s_lshl_b32 s{S_T2}, s{S_T1}, 8
    s_add_u32 s{S_T0}, s{S_T0}, s{S_T2}
    s_lshl_b32 s{S_T2}, s{S_W}, 6
    s_add_u32 s{S_T0}, s{S_T0}, s{S_T2}
    s_lshl_b32 s{S_T1}, s{S_T1}, 16
    s_lshl_b32 s{S_T2}, s{S_W}, 14
    s_add_u32 s{S_T1}, s{S_T1}, s{S_T2}
    s_lshr_b32 s{S_T2}, s{S_H}, 3
    s_lshl_b32 s{S_T2}, s{S_T2}, 18
    s_add_u32 s{S_T1}, s{S_T1}, s{S_T2}
    s_bfe_u32 s{S_T2}, s{S_H}, 0x10002
    s_lshl_b32 s{S_T2}, s{S_T2}, 11
    s_add_u32 s{S_T1}, s{S_T1}, s{S_T2}
    s_lshl_b32 s{S_T2}, s{S_L}, 21
    s_add_u32 s{S_T2}, s{S_T2}, s{S_T0}
    s_xor_b32 s{S_PB}, s{S_PB}, 0x100000
    """)
    sbase(A, 28, 28, 0, S_T1); sbase(A, 24, S_WS, WS_X1, S_T2)
    A(f"global_load_dword {v(X1r)}, {v(AXO)}, s[24:25] sc1")
    sbase(A, 26, S_WS, WS_X2)
    A(f"s_cmp_eq_u32 s{S_L}, 0\ns_cselect_b32 s26, s26, s{S_OUT}\ns_cselect_b32 s27, s27, s{S_OUT+1}")
    sbase(A, 26, 26, 0, S_T0)
    gbar(A, st, lab + "_g2")
    for u in range(4):
        for hf in range(2): A(f"global_load_dwordx4 {v(PL+8*u+4*hf,4)}, {v(L16)}, s[28:29] offset:{1024*hf} sc1")
        if u < 3: sbase(A, 28, 28, 4096)
    for u in range(4):
        for hf in range(2):
            A(f"s_waitcnt vmcnt({7-2*u-hf})")
            mf32(A, RD+4*u, SELA, PL+8*u+4*hf, RD+4*u if hf else None)
    for u in range(4):
        for e in range(2): A(f"v_add_f32_dpp {v(RD+4*u+e)}, {v(RD+4*u+e)}, {v(RD+4*u+e)} row_ror:8 row_mask:0xf bank_mask:0xf")
    for u in range(4):
        for e in range(2): A(f"v_add_f32_dpp {v(RES+e)}, {v(RD+4*u+e)}, {v(RD+4*u+e)} row_ror:4 row_mask:0xf bank_mask:{1 << u:#x}")
    A(f"""
    v_cvt_pk_bf16_f32 {v(RES)}, {v(RES)}, {v(RES+1)}
    v_lshlrev_b32 {v(RES+2)}, 16, {v(RES)}
    v_and_b32 {v(RES+3)}, 0xffff0000, {v(RES)}
    v_lshlrev_b32 {v(RES+4)}, 16, {v(X1r)}
    v_and_b32 {v(RES+5)}, 0xffff0000, {v(X1r)}
    v_pk_add_f32 {v(RES+2,2)}, {v(RES+2,2)}, {v(RES+4,2)}
    v_cvt_pk_bf16_f32 {v(RES)}, {v(RES+2)}, {v(RES+3)}
    global_store_dword {v(AXO)}, {v(RES)}, s[26:27] {st}
    s_cmp_eq_u32 s{S_L}, 0
    s_cbranch_scc0 {lab}_e
    """)
    R = RowDFT
    A(f"v_lshlrev_b32 v100, 4, v0\ns_lshl_b32 s{S_T0}, s{S_H}, 14\ns_lshl_b32 s{S_T1}, s{S_W}, 12\ns_add_u32 s{S_T0}, s{S_T0}, s{S_T1}")
    sbase(A, 20, S_WS, WS_FF, S_T0)
    for j in range(4): A(f"global_load_dwordx4 {v(R.FA+4*j,4)}, v100, s[20:21] offset:{1024*j}")
    R.setup(A)
    A(f"s_lshl_b32 s{S_T0}, s{S_SEG}, 15")
    sbase(A, 24, S_WS, WS_X2, S_T0); sbase(A, 26, 24, 16384)
    A(f"s_lshl_b32 s{S_T0}, s{S_H}, 16\ns_lshl_b32 s{S_T1}, s{S_SEG}, 7\ns_add_u32 s{S_T0}, s{S_T0}, s{S_T1}")
    sbase(A, 28, S_WS, WS_Y1 + 0x200000, S_T0)
    gbar(A, st, lab + "_g3")
    R.load(A, 24, 26, "sc1"); R.compute(A, 0); R.finish(A, 28, "sc1")
    A(f"s_lshl_b32 s{S_T0}, s{S_H}, 6\ns_add_u32 s{S_T0}, s{S_T0}, s{S_SEG}")
    post_flag(A, WS_Y1F, S_T0, lab + "_f")
    A(f"{lab}_e:")

def worker(A, st, lab):
    A(f"v_lshlrev_b32 v1, 4, v0\ns_mov_b32 s{S_TO}, 0")
    sbase(A, 20, S_WS, WS_Y2F)
    A(f"{lab}_y2:\nglobal_load_dwordx4 v[4:7], v1, s[20:21] sc1")
    spin_guard(A)
    A(f"""
    s_waitcnt vmcnt(0)
    v_min3_u32 v4, v4, v5, v6
    v_min_u32 v4, v4, v7
    v_cmp_ge_u32 vcc, s{S_L}, v4
    s_cbranch_vccz {lab}_y2d
    s_sleep 2
    s_branch {lab}_y2
    {lab}_y2d:
    s_sub_u32 s{S_SEG}, s{S_G}, 1
    {lab}_F:
    """)
    front(A, st, lab + "_F")
    A(f"s_add_u32 s{S_SEG}, s{S_SEG}, 7\ns_cmp_lt_u32 s{S_SEG}, 64\ns_cbranch_scc1 {lab}_F\ns_sub_u32 s{S_SEG}, s{S_G}, 1\n{lab}_B:")
    back(A, st, lab + "_B")
    A(f"s_add_u32 s{S_SEG}, s{S_SEG}, 7\ns_cmp_lt_u32 s{S_SEG}, 64\ns_cbranch_scc1 {lab}_B")
```

```python
import sys
sys.path.insert(0, "gen")
from common import *
import k0
NAME = "interleave_layers__spectral_gfnet__memory_aug_recurrent_mem_tr__prompt"
def kernel(name, body, vgpr, agpr, sgpr=102):
    acc = (vgpr + 3)//4*4
    return (f".text\n.globl {name}\n.p2align 8\n.type {name},@function\n{name}:\n{body}\n",
            f""".amdhsa_kernel {name}
  .amdhsa_next_free_vgpr {acc + agpr if agpr else vgpr}
  .amdhsa_next_free_sgpr {sgpr}
  .amdhsa_accum_offset {acc}
  .amdhsa_group_segment_fixed_size 0
  .amdhsa_kernarg_size 104
  .amdhsa_user_sgpr_count 2
  .amdhsa_user_sgpr_kernarg_segment_ptr 1
  .amdhsa_system_sgpr_workgroup_id_x 1
  .amdhsa_float_denorm_mode_32 3
  .amdhsa_float_denorm_mode_16_64 3
.end_amdhsa_kernel
""")
def build(**opt):
    import kb
    ks = [("prep_kernel", k0.gen_k0(bool(opt.get('prof'))), 192, 0, 147456), ("main_kernel", kb.gen_kb(**opt), 256, 256, 163840)]
    hdr = "".join(f"; @launch kernel={n} grid=(256,1,1) block=(256,1,1) lds={l}\n" for n, _, _, _, l in ks)
    out = hdr + '.amdgcn_target "amdgcn-amd-amdhsa--gfx950"\n'
    kds = ""
    for n, b, vg, ag, l in ks:
        t, kd = kernel(n, fix_hazards(b), vg, ag)
        out += t; kds += ".p2align 6\n" + kd
    out += '.section .rodata,"a"\n' + kds
    return out
if __name__ == "__main__":
    opt = eval(sys.argv[2]) if len(sys.argv) > 2 else {}
    path = sys.argv[1] if len(sys.argv) > 1 else f"cdna_kernels/{NAME}.s"
    s = build(**opt)
    open(path, "w").write(s)
    print("wrote", path, len(s), "bytes", s.count("\n"), "lines")
```

```python
import struct
from asmlib import *
def fbits(x): return struct.unpack("<I", struct.pack("<f", x))[0]
SENT = 0xFF81FF81
WS_EL   = 0x0000
WS_GB   = 0x1000
WS_KVF  = 0x2000
WS_Y1F  = 0x5000
WS_Y2F  = 0x7000
WS_FLAG_END = 0x10000
WS_P    = 0x40000
WS_M    = 0x80000
WS_CT   = 0x90000
WS_WB   = 0xA0000
WS_MH   = 0x100000
WS_FF   = 0x200000
WS_FI   = 0x280000
WS_WT   = 0x400000
WS_Y1   = 0x600000
WS_Y2   = 0xA00000
WS_X1   = 0xE00000
WS_X2   = 0x1200000
WS_PW   = 0x1400000
WS_Q    = 0x2800000
WS_KV   = 0x4000000
KV_LAYER = 0x2400000
WS_END  = WS_KV + 2*KV_LAYER

S_X, S_OUT, S_WS = 4, 6, 8
S_WG, S_W, S_H, S_G, S_L = 2, 10, 11, 12, 13
S_T0, S_T1, S_T2, S_T3 = 14, 15, 16, 17

def sbase(A, dst, src, const=0, add=None):
    if add is not None:
        A(f"s_add_u32 s{dst}, s{src}, s{add}\ns_addc_u32 s{dst+1}, s{src+1}, 0")
        if const: A(f"s_add_u32 s{dst}, s{dst}, {const:#x}\ns_addc_u32 s{dst+1}, s{dst+1}, 0")
    else:
        A(f"s_add_u32 s{dst}, s{src}, {const:#x}\ns_addc_u32 s{dst+1}, s{src+1}, 0")
def cvt(A, d, x, y, nx=False, ny=False):
    A(f"v_cvt_pk_bf16_f32 {v(d)}, {'-' if nx else ''}{v(x)}, {('-' if ny else '') + v(y) if y is not None else 0}")
def mf32(A, d, a_, b_, c=None):
    A(f"v_mfma_f32_16x16x32_bf16 {v(d,4)}, {v(a_,4)}, {v(b_,4)}, {v(c,4) if c is not None else 0}")
def mf16(A, d, a_, b_, c=None):
    A(f"v_mfma_f32_16x16x16_bf16 {v(d,4)}, {v(a_,2)}, {v(b_,2)}, {v(c,4) if c is not None else 0}")
def phi(g, j): return 16*(j >> 2) + 4*g + (j & 3)

S_EP = 18
S_TO = 19
TIMEOUT = 400000
LDS_WV = 32768
C_SCALE = float(128 ** -0.5 * 1.4426950408889634)
A_, B_ = 0, 1
SEQ = [("qk",0,0,A_),("qk",0,0,B_),("qk",1,0,A_),("qk",1,0,B_),("v",0,0),("v",0,1),("v",1,0),("v",1,1),
       ("qk",0,1,A_),("qk",0,1,B_),("qk",1,1,A_),("qk",1,1,B_)]
for _rho in range(2, 6): SEQ += [("qk",_rho,0,A_),("qk",_rho,0,B_),("qk",_rho,1,A_),("qk",_rho,1,B_)]
SEQ += [("qk",6,0,A_),("qk",6,1,A_),("qk",7,0,A_),("qk",7,1,A_),("qk",6,0,B_),("qk",6,1,B_),("qk",7,0,B_),("qk",7,1,B_)]
LDS_SET = SEQ[:6] + [SEQ[19], SEQ[23], SEQ[27], SEQ[31]] + [("v",2,0), ("v",2,1), ("v",3,0), ("o",0,0), ("o",0,1), ("o",0,2)]
CHUNKS = [("qk",2),("qk",6),("v",2),("v",3),("o",1),("o",2),("o",3),("qk",3),("qk",4),("qk",5),("qk",7),("qk",0),("qk",1),("v",0),("v",1),("o",0)]
def chunk_frags(c):
    if c[0] == "qk": return [("qk", c[1], rot, tau) for rot in range(2) for tau in range(2)]
    if c[0] == "v": return [("v", 2*c[1]+p, tau) for p in range(2) for tau in range(2)]
    return [("o", c[1], j) for j in range(4)]
LDS_FRAGS = [f for c in CHUNKS for f in chunk_frags(c) if f in LDS_SET]
_all = [f for c in CHUNKS for f in chunk_frags(c) if f not in LDS_SET]
REG_FRAGS = [f for f in _all if f[0] == "o"] + [f for f in _all if f[0] != "o"]
assert len(LDS_FRAGS) == 16 and len(REG_FRAGS) == 48
def wres(f): return 128 + 8*REG_FRAGS.index(f)
def wslot(f): return 2048*LDS_FRAGS.index(f)
def smf(A, d, x, wr, idx): A(f"v_smfmac_f32_16x16x64_bf16 {v(d,4)}, {v(x,4)}, {r(wr,8)}, {v(idx)}")
def spin_guard(A): A(f"s_add_u32 s{S_TO}, s{S_TO}, 1\ns_cmp_gt_u32 s{S_TO}, {TIMEOUT}\ns_cbranch_scc1 KB_fail")

class Prof:
    names = []
    layer = 0
def stamp(A, name):
    if name in Prof.names:
        k = Prof.names.index(name); l = A.label("PS")
        A(f"s_cmp_eq_u32 s{S_L}, {Prof.layer}\ns_cbranch_scc0 {l}\ns_memrealtime s[{76+2*k}:{77+2*k}]")
        if name + "c" in Prof.names:
            k = Prof.names.index(name + "c"); A(f"s_memtime s[{76+2*k}:{77+2*k}]")
        A(f"{l}:")
```

```python
from common import *

def lane_consts(A, lane, n, g):
    A(f"v_and_b32 {v(n)}, 15, {v(lane)}\nv_lshrrev_b32 {v(g)}, 4, {v(lane)}")

class RowDFT:
    FA = 8
    XB = 24
    D = 56
    ST = 64
    AX, AWR, ASW, ARD, ASR, AOUT, ONE = 1, 2, 3, 4, 5, 6, 7
    R = 68
    LDS_D, LDS_S = 0, 8192
    @classmethod
    def setup(c, A):
        n, g, t = 68, 69, 70
        lane_consts(A, 0, n, g)
        A(f"""
        v_lshlrev_b32 {v(c.AX)}, 10, {v(n)}
        v_lshl_add_u32 {v(c.AX)}, {v(g)}, 4, {v(c.AX)}
        s_lshl_b32 s{S_T0}, s{S_W}, 8
        v_add_u32 {v(c.AX)}, s{S_T0}, {v(c.AX)}
        v_lshlrev_b32 {v(t)}, 4, v0
        s_lshl_b32 s{S_T0}, s{S_W}, 11
        v_add_u32 {v(c.AWR)}, s{S_T0}, {v(t)}
        s_lshl_b32 s{S_T0}, s{S_W}, 2
        v_add_u32 {v(c.ASW)}, s{S_T0}, {v(t)}
        v_and_b32 {v(t)}, 1, {v(g)}
        v_lshlrev_b32 {v(c.ARD)}, 10, {v(t)}
        v_lshl_add_u32 {v(c.ARD)}, {v(n)}, 4, {v(c.ARD)}
        s_lshl_b32 s{S_T0}, s{S_W}, 8
        v_add_u32 {v(c.ARD)}, s{S_T0}, {v(c.ARD)}
        v_lshlrev_b32 {v(c.ASR)}, 9, {v(t)}
        v_lshl_add_u32 {v(c.ASR)}, {v(n)}, 4, {v(c.ASR)}
        v_lshrrev_b32 {v(t)}, 5, v0
        v_lshl_add_u32 {v(c.ARD)}, {v(t)}, 3, {v(c.ARD)}
        v_lshlrev_b32 {v(c.AOUT)}, 13, {v(t)}
        v_and_b32 {v(t)}, 31, v0
        v_lshl_add_u32 {v(c.AOUT)}, {v(t)}, 2, {v(c.AOUT)}
        s_lshl_b32 s{S_T0}, s{S_W}, 14
        v_add_u32 {v(c.AOUT)}, s{S_T0}, {v(c.AOUT)}
        v_mov_b32 {v(c.ONE)}, 0x3f803f80
        """)
    @classmethod
    def load(c, A, sx, sx2, fl):
        for j in range(4):
            for t in range(2):
                A(f"global_load_dwordx4 {v(c.XB+16*t+4*j,4)}, {v(c.AX)}, s[{(sx, sx2)[t]}:{(sx, sx2)[t]+1}] offset:{64*j} {fl}")
    @classmethod
    def load_frag(c, A, sx, l16):
        for j in range(4):
            for t in range(2):
                A(f"global_load_dwordx4 {v(c.XB+16*t+4*j,4)}, {v(l16)}, s[{sx}:{sx+1}] offset:{4096*t + 1024*j - 4096} sc1")
    @classmethod
    def compute(c, A, nyoung=0):
        for q in range(4): A(f"v_mov_b32 {v(c.ST+q)}, 0")
        for j in range(4):
            for t in range(2):
                A(f"s_waitcnt vmcnt({nyoung + 7 - 2*j - t})")
                x = c.XB + 16*t + 4*j
                mf32(A, c.D+4*t, c.FA+4*j, x, c.D+4*t if j else None)
                for q in range(4):
                    A(f"v_dot2c_f32_bf16 {v(c.ST+t)}, {v(x+q)}, {v(c.ONE)}\nv_dot2c_f32_bf16 {v(c.ST+2+t)}, {v(x+q)}, {v(x+q)}")
    @classmethod
    def finish(c, A, sy, fl):
        S, R = c.ST, c.R
        A(f"""
        ds_write_b128 {v(c.AWR)}, {v(c.D,4)} offset:{c.LDS_D}
        ds_write_b128 {v(c.AWR)}, {v(c.D+4,4)} offset:{c.LDS_D+1024}
        v_permlane32_swap_b32 {v(S)}, {v(S+1)}
        v_permlane32_swap_b32 {v(S+2)}, {v(S+3)}
        v_add_f32 {v(S)}, {v(S)}, {v(S+1)}
        v_add_f32 {v(S+2)}, {v(S+2)}, {v(S+3)}
        v_permlane16_swap_b32 {v(S)}, {v(S+2)}
        v_add_f32 {v(S)}, {v(S)}, {v(S+2)}
        ds_write_b32 {v(c.ASW)}, {v(S)} offset:{c.LDS_S}
        s_waitcnt lgkmcnt(0)
        s_barrier
        ds_read_b128 {v(R+8,4)}, {v(c.ASR)} offset:{c.LDS_S}
        ds_read_b128 {v(R+12,4)}, {v(c.ASR)} offset:{c.LDS_S+256}
        """)
        for k in range(4):
            A(f"ds_read_b64 {v(R+2*k,2)}, {v(c.ARD)} offset:{c.LDS_D + 2048*k}")
        A(f"""
        s_waitcnt lgkmcnt(4)
        v_pk_add_f32 {v(R+8,2)}, {v(R+8,2)}, {v(R+10,2)}
        v_pk_add_f32 {v(R+12,2)}, {v(R+12,2)}, {v(R+14,2)}
        v_add_f32 {v(R+8)}, {v(R+8)}, {v(R+9)}
        v_add_f32 {v(R+12)}, {v(R+12)}, {v(R+13)}
        v_mul_f32 {v(R+8)}, {fbits(1/512):#x}, {v(R+8)}
        v_mul_f32 {v(R+12)}, {fbits(1/512):#x}, {v(R+12)}
        v_fma_f32 {v(R+12)}, -{v(R+8)}, {v(R+8)}, {v(R+12)}
        v_max_f32 {v(R+12)}, 0, {v(R+12)}
        v_add_f32 {v(R+12)}, {fbits(1e-5):#x}, {v(R+12)}
        v_rsq_f32 {v(R+12)}, {v(R+12)}
        s_waitcnt lgkmcnt(0)
        s_barrier
        v_pk_add_f32 {v(R,2)}, {v(R,2)}, {v(R+2,2)}
        v_pk_add_f32 {v(R+4,2)}, {v(R+4,2)}, {v(R+6,2)}
        v_pk_add_f32 {v(R,2)}, {v(R,2)}, {v(R+4,2)}
        v_pk_mul_f32 {v(R,2)}, {v(R,2)}, {v(R+12,2)} op_sel_hi:[1,0]
        v_cvt_pk_bf16_f32 {v(R)}, {v(R)}, {v(R+1)}
        global_store_dword {v(c.AOUT)}, {v(R)}, s[{sy}:{sy+1}] {fl}
        """)

def column(A, sf, sy1, sy2, wait_inputs, lab):
    L16, AT0, AT1, AW2a, AW2b, AFW, ADM = 1, 2, 3, 4, 5, 6, 7
    CS64, CS32, TW, PQ, FR, WF, WB = 8, 24, 40, 56, 88, 104, 112
    T = 120
    n, g = T, T+1
    lane_consts(A, 0, n, g)
    A(f"v_lshlrev_b32 {v(L16)}, 4, v0")
    A(f"s_lshl_b32 s{S_T0}, s{S_W}, 12")
    sbase(A, 20, S_WS, WS_CT, S_T0)
    for q in range(4): A(f"global_load_dwordx4 {v(CS64+4*q,4)}, {v(L16)}, s[20:21] offset:{1024*q}")
    sbase(A, 20, 20, 0x8000)
    for q in range(4): A(f"global_load_dwordx4 {v(TW+4*q,4)}, {v(L16)}, s[20:21] offset:{1024*q}")
    sbase(A, 20, S_WS, WS_CT + 0x4000)
    for q in range(4): A(f"global_load_dwordx4 {v(CS32+4*q,4)}, {v(L16)}, s[20:21] offset:{1024*q}")
    A(f"s_lshl_b32 s{S_T0}, s{sf}, 13\ns_lshl_b32 s{S_T1}, s{S_W}, 11\ns_add_u32 s{S_T0}, s{S_T0}, s{S_T1}")
    sbase(A, 20, S_WS, WS_WT, S_T0)
    for q in range(2): A(f"global_load_dwordx4 {v(WF+4*q,4)}, {v(L16)}, s[20:21] offset:{1024*q}")
    sbase(A, 20, S_WS, WS_WB, S_T1)
    for q in range(2): A(f"global_load_dwordx4 {v(WB+4*q,4)}, {v(L16)}, s[20:21] offset:{1024*q}")
    sbase(A, sy1, sy1, 0, S_T0); sbase(A, sy2, sy2, 0, S_T0)
    A(f"""
    v_and_b32 {v(T+2)}, 16, v0
    v_lshlrev_b32 {v(T+2)}, 2, {v(T+2)}
    v_xor_b32 {v(ADM)}, {v(T+2)}, {v(L16)}
    v_lshrrev_b32 {v(T+2)}, 2, {v(n)}
    v_lshl_add_u32 {v(T+3)}, {v(g)}, 3, {v(T+2)}
    v_lshlrev_b32 {v(T+3)}, 7, {v(T+3)}
    v_lshrrev_b32 {v(T+2)}, 1, {v(T+2)}
    v_lshl_add_u32 {v(T+3)}, {v(T+2)}, 6, {v(T+3)}
    v_and_b32 {v(T+2)}, 3, {v(n)}
    v_lshl_add_u32 {v(AT0)}, {v(T+2)}, 4, {v(T+3)}
    v_xor_b32 {v(AT1)}, 64, {v(AT0)}
    v_lshlrev_b32 {v(AFW)}, 7, {v(n)}
    v_lshl_add_u32 {v(AFW)}, {v(g)}, 4, {v(AFW)}
    v_add_u32 {v(AFW)}, s{S_T1}, {v(AFW)}
    v_and_b32 {v(T+2)}, 2, {v(n)}
    v_lshlrev_b32 {v(T+2)}, 5, {v(T+2)}
    v_xor_b32 {v(AW2a)}, {v(T+2)}, {v(AFW)}
    v_xor_b32 {v(AW2b)}, 64, {v(AW2a)}
    s_mov_b32 m0, s{S_T1}
    """)
    wait_inputs()
    A(f"global_load_lds_dwordx4 {v(ADM)}, s[{sy1}:{sy1+1}] sc1\nglobal_load_lds_dwordx4 {v(ADM)}, s[{sy1}:{sy1+1}] offset:1024 sc1")
    A("s_waitcnt vmcnt(0)\ns_barrier")
    def stage64(img):
        DS = Ctr(A, "lgkmcnt", 15)
        seq = [(t, ks) for t in range(4) for ks in range(2)]
        def rd(i):
            t, ks = seq[i]
            for u in range(2):
                DS.issue(f"ds_read_b64_tr_b16 {v(FR+4*(i & 3)+2*u,2)}, {v(AT1 if t >> 1 else AT0)} offset:{img + ks*4096 + u*512 + 8*(t & 1)}", i)
        for i in range(4): rd(i)
        for i, (t, ks) in enumerate(seq):
            DS.wait(i)
            mf32(A, PQ+4*t, FR+4*(i & 3), CS64+4*ks, PQ+4*t if ks else None)
            mf32(A, PQ+16+4*t, FR+4*(i & 3), CS64+8+4*ks, PQ+16+4*t if ks else None)
            if i + 4 < 8: rd(i+4)
    Pr = lambda j: PQ + 2*j; Pi = lambda j: PQ + 2*j + 1; Qr = lambda j: PQ + 16 + 2*j; Qi = lambda j: PQ + 17 + 2*j
    def twiddle(re, im, ore, oim):
        for j in range(8):
            tc, ts = TW + j, TW + 8 + j
            A(f"v_mul_f32 {v(T)}, {v(re(j))}, {v(tc)}\nv_mul_f32 {v(T+1)}, {v(im(j))}, {v(tc)}")
            A(f"v_fma_f32 {v(T+1)}, -{v(re(j))}, {v(ts)}, {v(T+1)}")
            A(f"v_fma_f32 {v(ore(j))}, {v(im(j))}, {v(ts)}, {v(T)}\nv_mov_b32 {v(oim(j))}, {v(T+1)}")
    def stage32(re, im, dre, dim, conj=False):
        for q in range(4):
            cvt(A, FR+q, re(2*q), re(2*q+1))
            cvt(A, FR+4+q, im(2*q), im(2*q+1), conj, conj)
            cvt(A, FR+8+q, re(2*q), re(2*q+1), True, True)
        for Tt in range(2):
            mf32(A, dre+4*Tt, CS32+4*Tt, FR); mf32(A, dim+4*Tt, CS32+4*Tt, FR+4)
        for Tt in range(2):
            mf32(A, dre+4*Tt, CS32+8+4*Tt, FR+4, dre+4*Tt); mf32(A, dim+4*Tt, CS32+8+4*Tt, FR+8, dim+4*Tt)
    def cmul(xr, xi, wreg, acc):
        for j in range(8):
            A(f"v_lshlrev_b32 {v(T)}, 16, {v(wreg+j)}\nv_and_b32 {v(T+1)}, 0xffff0000, {v(wreg+j)}")
            if acc:
                A(f"v_fmac_f32 {v(PQ+j)}, {v(xr+j)}, {v(T)}\nv_fmac_f32 {v(PQ+8+j)}, {v(xi+j)}, {v(T)}")
                A(f"v_fma_f32 {v(PQ+j)}, -{v(xi+j)}, {v(T+1)}, {v(PQ+j)}\nv_fmac_f32 {v(PQ+8+j)}, {v(xr+j)}, {v(T+1)}")
            else:
                A(f"v_mul_f32 {v(T+2)}, {v(xr+j)}, {v(T)}\nv_mul_f32 {v(T+3)}, {v(xi+j)}, {v(T)}")
                A(f"v_fmac_f32 {v(T+3)}, {v(xr+j)}, {v(T+1)}")
                A(f"v_fma_f32 {v(PQ+j)}, -{v(xi+j)}, {v(T+1)}, {v(T+2)}\nv_mov_b32 {v(PQ+8+j)}, {v(T+3)}")
    stage64(0)
    for j in range(8):
        A(f"v_sub_f32 {v(T)}, {v(Pr(j))}, {v(Qi(j))}\nv_add_f32 {v(Pr(j))}, {v(Pr(j))}, {v(Qi(j))}\nv_mov_b32 {v(Qi(j))}, {v(T)}")
        A(f"v_add_f32 {v(T+1)}, {v(Pi(j))}, {v(Qr(j))}\nv_sub_f32 {v(Pi(j))}, {v(Pi(j))}, {v(Qr(j))}\nv_sub_f32 {v(Qr(j))}, 0, {v(T+1)}")
    twiddle(Pr, Pi, Pr, Pi)
    stage32(Pr, Pi, PQ, PQ+8)
    cmul(PQ, PQ+8, WF, False)
    A(f"s_cmp_eq_u32 s{sf}, 0\ns_cbranch_scc0 {lab}_nz")
    twiddle(Qi, Qr, Qi, Qr)
    stage32(Qi, Qr, PQ+16, PQ+24)
    cmul(PQ+16, PQ+24, WB, True)
    A(f"{lab}_nz:")
    yr = lambda j: PQ + j; yi = lambda j: PQ + 8 + j
    stage32(yr, yi, PQ+16, PQ+24, conj=True)
    ur = lambda j: PQ + 16 + j; ui = lambda j: PQ + 24 + j
    twiddle(ur, ui, ur, ui)
    for j in range(8): cvt(A, PQ+j, ur(j), ui(j))
    A(f"ds_write_b128 {v(AW2a)}, {v(PQ,4)} offset:8192\nds_write_b128 {v(AW2b)}, {v(PQ+4,4)} offset:8192\ns_waitcnt lgkmcnt(0)\ns_barrier")
    stage64(8192)
    for j in range(8):
        A(f"v_add_f32 {v(Pr(j))}, {v(Pr(j))}, {v(Qi(j))}\nv_sub_f32 {v(Pi(j))}, {v(Qr(j))}, {v(Pi(j))}")
        cvt(A, FR+j, Pr(j), Pi(j))
    A(f"""
    ds_write_b128 {v(AFW)}, {v(FR,4)} offset:16384
    ds_write_b128 {v(AFW)}, {v(FR+4,4)} offset:{16384+64}
    v_add_u32 {v(T)}, s{S_T1}, {v(L16)}
    ds_read_b128 {v(FR+8,4)}, {v(T)} offset:16384
    ds_read_b128 {v(FR+12,4)}, {v(T)} offset:{16384+1024}
    s_waitcnt lgkmcnt(1)
    global_store_dwordx4 {v(L16)}, {v(FR+8,4)}, s[{sy2}:{sy2+1}] sc1
    s_waitcnt lgkmcnt(0)
    global_store_dwordx4 {v(L16)}, {v(FR+12,4)}, s[{sy2}:{sy2+1}] offset:1024 sc1
    """)
```

```python
from common import *
from fft import *

def prologue(A, lab_end):
    A(f"""
    s_cmp_ge_u32 s2, 256
    s_cbranch_scc1 {lab_end}
    s_load_dwordx2 s[{S_X}:{S_X+1}], s[0:1], 0
    s_load_dwordx2 s[{S_OUT}:{S_OUT+1}], s[0:1], 80
    s_load_dwordx2 s[{S_WS}:{S_WS+1}], s[0:1], 96
    v_lshrrev_b32 v1, 6, v0
    v_readfirstlane_b32 s{S_W}, v1
    """)

def cosidx(A, dst, idx, bits, tmp=None):
    A(f"v_and_b32 {v(dst)}, {(1 << bits) - 1}, {v(idx)}\nv_cvt_f32_u32 {v(dst)}, {v(dst)}\nv_mul_f32 {v(dst)}, {fbits(1.0/(1 << bits)):#x}, {v(dst)}\nv_cos_f32 {v(dst)}, {v(dst)}")

def gen_k0(prof=False):
    A = Asm()
    prologue(A, "K0_end")
    if prof: A("s_memrealtime s[74:75]")
    TID = 100
    A(f"""
    s_load_dwordx4 s[24:27], s[0:1], 8       ; w_r, w_i
    s_load_dwordx2 s[28:29], s[0:1], 32      ; mem0
    v_mov_b32 {v(TID)}, v0
    v_and_b32 v0, 63, v0
    s_and_b32 s{S_H}, s2, 31
    s_lshr_b32 s{S_G}, s2, 5
    s_waitcnt lgkmcnt(0)
    """)
    R = RowDFT
    AD, ARX = 1, 2
    XL = 16384
    A(f"""
    v_lshrrev_b32 v3, 2, v0
    v_lshlrev_b32 {v(AD)}, 10, v3
    v_and_b32 v3, 3, v0
    v_lshl_add_u32 {v(AD)}, v3, 4, {v(AD)}
    v_and_b32 v3, 32, v0
    v_xor_b32 {v(AD)}, v3, {v(AD)}
    s_lshl_b32 s{S_T0}, s{S_G}, 18
    s_lshl_b32 s{S_T1}, s{S_W}, 16
    s_add_u32 s{S_T0}, s{S_T0}, s{S_T1}
    s_lshl_b32 s37, s{S_W}, 15
    s_add_u32 s37, s37, {XL}
    v_and_b32 v3, 15, v0
    v_lshlrev_b32 {v(ARX)}, 6, v3
    v_lshrrev_b32 v4, 4, v0
    v_lshl_add_u32 {v(ARX)}, v4, 4, {v(ARX)}
    v_and_b32 v3, 8, v0
    v_lshlrev_b32 v3, 2, v3
    v_xor_b32 {v(ARX)}, v3, {v(ARX)}
    v_add_u32 {v(ARX)}, s37, {v(ARX)}
    """)
    sbase(A, 30, S_X, 0, S_T0)
    def xdma(tile):
        for k in range(16):
            A(f"s_add_u32 m0, s37, {(tile & 1)*16384 + 1024*k - 64*k}\ns_nop 0\nglobal_load_lds_dwordx4 {v(AD)}, s[30:31] offset:{64*k}")
        sbase(A, 30, 30, 16384)
    xdma(0); xdma(1)
    fl, kk, ad, ao = 101, 102, 103, 104
    WR = 108
    A(f"""
    s_lshr_b32 s{S_T0}, s2, 3
    s_lshr_b32 s{S_T1}, s{S_T0}, 3          ; w'
    s_and_b32 s{S_T2}, s{S_T0}, 7           ; half*4+g
    s_and_b32 s{S_T3}, s2, 7
    v_and_b32 {v(fl)}, 31, {v(TID)}
    s_lshl_b32 s18, s{S_T3}, 5
    v_add_u32 {v(fl)}, s18, {v(fl)}          ; f
    v_lshrrev_b32 {v(kk)}, 5, {v(TID)}       ; k1l in 0..7 (+8)
    s_lshl_b32 s18, s{S_T1}, 4
    s_lshl_b32 s19, s{S_T2}, 8               ; 64*4*(half*4+g)
    s_add_u32 s18, s18, s19
    v_add_u32 {v(ad)}, s18, {v(kk)}
    v_mul_u32_u24 {v(ad)}, 514, {v(ad)}
    v_lshl_add_u32 {v(ad)}, {v(fl)}, 1, {v(ad)}
    """)
    for p in range(2):
        for i in range(4):
            off = (8*p + 64*i) * 514
            A(f"v_add_u32 {v(ao)}, {off}, {v(ad)}")
            A(f"global_load_ushort {v(WR+4*p+i)}, {v(ao)}, s[24:25]\nglobal_load_ushort {v(WR+8+4*p+i)}, {v(ao)}, s[26:27]")
    n, g = 84, 85
    lane_consts(A, 0, n, g)
    fe, ph, sc, d0, t0, t1 = 86, 87, 88, 89, 90, 91
    A(f"""
    v_lshrrev_b32 {v(fe)}, 1, {v(n)}
    s_lshl_b32 s18, s{S_H}, 3
    v_add_u32 {v(fe)}, s18, {v(fe)}
    v_and_b32 {v(t0)}, 1, {v(n)}
    v_lshlrev_b32 {v(ph)}, 7, {v(t0)}
    v_cvt_f32_u32 {v(t1)}, {v(t0)}
    v_cmp_eq_u32 vcc, 0, {v(fe)}
    v_cndmask_b32 {v(sc)}, 1.0, {v(t1)}, vcc
    v_cndmask_b32 {v(ph)}, {v(ph)}, 0, vcc
    v_mov_b32 {v(t0)}, 256
    v_cndmask_b32 {v(fe)}, {v(fe)}, {v(t0)}, vcc
    s_lshl_b32 s18, s{S_W}, 7
    v_lshl_add_u32 {v(d0)}, {v(g)}, 3, s18
    v_mad_u32_u24 {v(d0)}, {v(d0)}, {v(fe)}, {v(ph)}
    """)
    for j in range(4):
        for q in range(4):
            for e in range(2):
                k = 32*j + 2*q + e
                A(f"v_mad_u32_u24 {v(t0+e)}, {v(fe)}, {k if k <= 64 else 's19'}, {v(d0)}" if k <= 64 else f"s_mov_b32 s19, {k}\nv_mad_u32_u24 {v(t0+e)}, {v(fe)}, s19, {v(d0)}")
                cosidx(A, t0+e, t0+e, 9)
                A(f"v_mul_f32 {v(t0+e)}, {v(t0+e)}, {v(sc)}")
            cvt(A, R.FA+4*j+q, t0, t1)
    L16 = 92
    A(f"v_lshlrev_b32 {v(L16)}, 4, v0\ns_lshl_b32 s18, s{S_H}, 14\ns_lshl_b32 s19, s{S_W}, 12\ns_add_u32 s18, s18, s19")
    A("s_waitcnt vmcnt(0)")
    for q in range(8): A(f"v_lshl_or_b32 {v(WR+q)}, {v(WR+8+q)}, 16, {v(WR+q)}")
    A(f"""
    v_lshlrev_b32 {v(ao)}, 13, {v(fl)}
    v_lshl_add_u32 {v(ao)}, {v(kk)}, 4, {v(ao)}
    s_lshl_b32 s19, s{S_T0}, 8
    v_add_u32 {v(ao)}, s19, {v(ao)}
    """)
    sbase(A, 20, S_WS, WS_WT)
    A(f"""
    v_cmp_ne_u32 vcc, 0, {v(fl)}
    s_and_saveexec_b64 s[22:23], vcc
    global_store_dwordx4 {v(ao)}, {v(WR,4)}, s[20:21]
    global_store_dwordx4 {v(ao)}, {v(WR+4,4)}, s[20:21] offset:128
    s_mov_b64 exec, s[22:23]
    """)
    F = 96
    A(f"""
    v_lshlrev_b32 {v(t0)}, 4, {v(TID)}
    s_lshl_b32 s19, s2, 12
    """)
    sbase(A, 20, S_WS, WS_MH, 19)
    for q in range(4): A(f"v_mov_b32 {v(F+q)}, {SENT:#x}")
    A(f"""
    v_lshlrev_b32 {v(t1)}, 2, {v(TID)}
    s_lshl_b32 s19, s2, 10
    """)
    sbase(A, 22, S_WS, WS_P, 19)
    A(f"global_store_dword {v(t1)}, {v(F)}, s[22:23]")
    A(f"s_and_b32 s19, s19, 0x3fff")
    sbase(A, 22, S_WS, WS_M, 19)
    A(f"global_store_dword {v(t1)}, {v(F)}, s[22:23]")
    A(f"s_lshl_b32 s19, s2, 8\nv_mov_b32 {v(fe)}, 0")
    sbase(A, 22, S_WS, 0, 19)
    A(f"global_store_byte {v(TID)}, {v(fe)}, s[22:23]")
    A(f"""
    s_and_b32 s19, s2, 126
    s_cmp_eq_u32 s19, 0
    s_cbranch_scc0 K0_nomem
    s_and_b32 s19, s2, 1
    s_lshl_b32 s19, s19, 2
    s_add_u32 s19, s19, s{S_W}
    s_lshl_b32 s19, s19, 7
    v_and_b32 {v(t1)}, 7, v0
    v_lshlrev_b32 {v(t1)}, 10, {v(t1)}
    v_lshrrev_b32 {v(fe)}, 3, v0
    v_lshl_add_u32 {v(t1)}, {v(fe)}, 4, {v(t1)}
    v_add_u32 {v(t1)}, s19, {v(t1)}
    v_mov_b32 {v(fe)}, {v(F)}
    global_load_dwordx4 {v(F,4)}, {v(t1)}, s[28:29]
    s_waitcnt vmcnt(0)
    v_cmp_eq_u32 vcc, {v(fe)}, {v(F)}
    v_cndmask_b32 {v(F)}, {v(F)}, -1, vcc
    K0_nomem:
    global_store_dwordx4 {v(t0)}, {v(F,4)}, s[20:21]
    """)
    A(f"s_cmp_eq_u32 s{S_G}, 0\ns_cbranch_scc0 K0_g1")
    sbase(A, 20, S_WS, WS_FF, 18)
    for j in range(4): A(f"global_store_dwordx4 {v(L16)}, {v(R.FA+4*j,4)}, s[20:21] offset:{1024*j}")
    A(f"s_branch K0_main\nK0_g1:\ns_cmp_eq_u32 s{S_G}, 1\ns_cbranch_scc0 K0_g2")
    sbase(A, 20, S_WS, WS_FI, 18)
    A(f"""
    s_lshl_b32 s19, s{S_H}, 4
    v_add_u32 {v(d0)}, s19, {v(n)}           ; d
    s_lshl_b32 s19, s{S_W}, 6
    v_lshl_add_u32 {v(fe)}, {v(g)}, 2, s19   ; f base
    """)
    for j in range(4):
        for q in range(4):
            A(f"v_add_u32 {v(ph)}, {16*j+q}, {v(fe)}\nv_mul_u32_u24 {v(t0)}, {v(ph)}, {v(d0)}\nv_add_u32 {v(t1)}, 128, {v(t0)}")
            if j == 0 and q == 0:
                A(f"v_cmp_eq_u32 vcc, 0, {v(ph)}\nv_lshlrev_b32 {v(sc)}, 8, {v(d0)}\nv_cndmask_b32 {v(t1)}, {v(t1)}, {v(sc)}, vcc\nv_cndmask_b32 {v(sc)}, 2.0, 1.0, vcc")
            elif j == 0 and q == 1: A(f"v_mov_b32 {v(sc)}, 2.0")
            for e in range(2):
                cosidx(A, t0+e, t0+e, 9)
                A(f"v_mul_f32 {v(t0+e)}, {v(t0+e)}, {v(sc)}")
            cvt(A, F+q, t0, t1)
        A(f"global_store_dwordx4 {v(L16)}, {v(F,4)}, s[20:21] offset:{1024*j}")
    A(f"s_branch K0_main\nK0_g2:\ns_cmp_eq_u32 s2, 64\ns_cbranch_scc0 K0_g3")
    A(f"s_lshl_b32 s19, s{S_W}, 12")
    sbase(A, 20, S_WS, WS_CT, 19)
    A(f"s_lshl_b32 s19, s{S_W}, 4\nv_add_u32 {v(fe)}, s19, {v(n)}")
    for q4 in range(4):
        for q in range(4):
            for e in range(2):
                A(f"v_lshl_add_u32 {v(t0+e)}, {v(g)}, 3, {32*(q4 & 1) + 2*q + e}\nv_mul_u32_u24 {v(t0+e)}, {v(t0+e)}, {v(fe)}")
                if q4 >= 2: A(f"v_add_u32 {v(t0+e)}, 48, {v(t0+e)}")
                cosidx(A, t0+e, t0+e, 6)
            cvt(A, F+q, t0, t1)
        A(f"global_store_dwordx4 {v(L16)}, {v(F,4)}, s[20:21] offset:{1024*q4}")
    sbase(A, 20, 20, 0x8000)
    for q4 in range(4):
        for q in range(4):
            A(f"v_lshl_add_u32 {v(F+q)}, {v(g)}, 2, {16*(q4 & 1) + q}\nv_mul_u32_u24 {v(F+q)}, {v(F+q)}, {v(fe)}")
            if q4 >= 2: A(f"v_add_u32 {v(F+q)}, 1536, {v(F+q)}")
            cosidx(A, F+q, F+q, 11)
            A(f"v_mul_f32 {v(F+q)}, {fbits(2.0**-10):#x}, {v(F+q)}")
        A(f"global_store_dwordx4 {v(L16)}, {v(F,4)}, s[20:21] offset:{1024*q4}")
    A(f"""
    s_and_b32 s19, s{S_W}, 1
    s_lshl_b32 s19, s19, 4
    v_add_u32 {v(fe)}, s19, {v(n)}           ; k2
    s_lshr_b32 s19, s{S_W}, 1
    s_mul_i32 s19, s19, 24
    """)
    for q in range(4):
        for e in range(2):
            j = 2*q + e
            A(f"v_lshl_add_u32 {v(t0+e)}, {v(g)}, 2, {16*(j >> 2) + (j & 3)}\nv_mad_u32_u24 {v(t0+e)}, {v(t0+e)}, {v(fe)}, s19")
            cosidx(A, t0+e, t0+e, 5)
        cvt(A, F+q, t0, t1)
    A(f"s_lshl_b32 s19, s{S_W}, 10")
    sbase(A, 20, S_WS, WS_CT + 0x4000, 19)
    A(f"global_store_dwordx4 {v(L16)}, {v(F,4)}, s[20:21]")
    A(f"s_branch K0_main\nK0_g3:\ns_lshr_b32 s19, s2, 3\ns_cmp_eq_u32 s19, 12\ns_cbranch_scc0 K0_main")
    k, km = 108, 109
    Wv = 112
    A(f"""
    s_and_b32 s19, s2, 7
    s_lshl_b32 s19, s19, 8
    v_add_u32 {v(k)}, s19, {v(TID)}
    v_sub_u32 {v(km)}, 2048, {v(k)}
    v_and_b32 {v(km)}, 2047, {v(km)}
    v_mul_u32_u24 {v(t0)}, 514, {v(k)}
    v_mul_u32_u24 {v(t1)}, 514, {v(km)}
    """)
    for q, (ad_, sp, off) in enumerate([(t0, 24, 0), (t0, 26, 0), (t1, 24, 0), (t1, 26, 0), (t0, 24, 512), (t0, 26, 512), (t1, 24, 512), (t1, 26, 512)]):
        A(f"global_load_ushort {v(Wv+q)}, {v(ad_)}, s[{sp}:{sp+1}] offset:{off}")
    A(f"""
    ; position: k1 = k&63, k2 = k>>6 : (k1>>4)*2048 + (k2>>4)*1024 + ((k2>>2)&3)*256 + (k1&15)*16 + (k2&3)*4
    v_bfe_u32 {v(fe)}, {v(k)}, 4, 2
    v_lshlrev_b32 {v(fe)}, 11, {v(fe)}
    v_lshrrev_b32 {v(ph)}, 8, {v(k)}
    v_lshl_add_u32 {v(fe)}, {v(ph)}, 8, {v(fe)}
    v_and_b32 {v(ph)}, 15, {v(k)}
    v_lshl_add_u32 {v(fe)}, {v(ph)}, 4, {v(fe)}
    v_bfe_u32 {v(ph)}, {v(k)}, 6, 2
    v_lshl_add_u32 {v(fe)}, {v(ph)}, 2, {v(fe)}
    s_waitcnt vmcnt(0)
    """)
    for q in range(8): A(f"v_lshlrev_b32 {v(Wv+q)}, 16, {v(Wv+q)}")
    A(f"""
    v_add_f32 {v(Wv)}, {v(Wv)}, {v(Wv+2)}
    v_sub_f32 {v(Wv+1)}, {v(Wv+1)}, {v(Wv+3)}
    v_add_f32 {v(Wv+4)}, {v(Wv+4)}, {v(Wv+6)}
    v_sub_f32 {v(Wv+5)}, {v(Wv+5)}, {v(Wv+7)}
    v_add_f32 {v(Wv+2)}, {v(Wv)}, {v(Wv+4)}
    v_add_f32 {v(Wv+3)}, {v(Wv+1)}, {v(Wv+5)}
    v_sub_f32 {v(Wv+6)}, {v(Wv)}, {v(Wv+4)}
    v_sub_f32 {v(Wv+7)}, {v(Wv+1)}, {v(Wv+5)}
    """)
    for q in (2, 3, 6, 7): A(f"v_mul_f32 {v(Wv+q)}, {fbits(0.25):#x}, {v(Wv+q)}")
    cvt(A, Wv, Wv+2, Wv+3); cvt(A, Wv+1, Wv+6, Wv+7)
    sbase(A, 20, S_WS, WS_WT); sbase(A, 22, S_WS, WS_WB)
    A(f"global_store_dword {v(fe)}, {v(Wv)}, s[20:21]\nglobal_store_dword {v(fe)}, {v(Wv+1)}, s[22:23]")
    FA, XB, D, S1, S2, ONE, AO, T = 128, 24, 56, 60, 61, 62, 63, 64
    A(f"K0_main:\ns_lshl_b32 s18, s{S_W}, 12\nv_add_u32 {v(T)}, s18, {v(L16)}")
    for j in range(4): A(f"ds_write_b128 {v(T)}, {v(R.FA+4*j,4)} offset:{1024*j}")
    A(f"""
    s_lshl_b32 s18, s{S_H}, 16
    s_lshl_b32 s19, s{S_G}, 10
    s_add_u32 s18, s18, s19
    s_lshl_b32 s19, s{S_W}, 8
    s_add_u32 s18, s18, s19
    v_lshlrev_b32 {v(AO)}, 14, {v(g)}
    v_lshl_add_u32 {v(AO)}, {v(n)}, 2, {v(AO)}
    v_mov_b32 {v(ONE)}, 0x3f803f80
    s_waitcnt lgkmcnt(0)
    s_barrier
    """)
    sbase(A, 34, S_WS, WS_Y1, 18); sbase(A, 32, 34, 8192)
    for k in range(16):
        A(f"ds_read_b128 {v(FA+4*k,4)}, {v(L16)} offset:{1024*k}")
        if k == 7: A("s_waitcnt lgkmcnt(4)")
    A("s_waitcnt vmcnt(0) lgkmcnt(0)")
    for tile in range(4):
        if tile == 2: A("s_waitcnt vmcnt(20)")
        if tile == 3: A("s_waitcnt vmcnt(4)")
        DS = Ctr(A, "lgkmcnt", 15)
        rd = lambda k: DS.issue(f"ds_read_b128 {v(XB+4*(k & 7),4)}, {v(ARX)} offset:{(tile & 1)*16384 + 1024*k}", k)
        for k in range(8): rd(k)
        A(f"v_mov_b32 {v(S1)}, 0\nv_mov_b32 {v(S2)}, 0")
        for k in range(16):
            DS.wait(k)
            x = XB + 4*(k & 7)
            mf32(A, D, FA+4*k, x, D if k else None)
            for q in range(4): A(f"v_dot2c_f32_bf16 {v(S1)}, {v(x+q)}, {v(ONE)}\nv_dot2c_f32_bf16 {v(S2)}, {v(x+q)}, {v(x+q)}")
            if k + 8 < 16: rd(k+8)
        if tile < 2: xdma(tile + 2)
        for s_ in (S1, S2):
            for sw in ("16", "32"):
                A(f"v_mov_b32 {v(T)}, {v(s_)}\nv_permlane{sw}_swap_b32 {v(s_)}, {v(T)}\nv_add_f32 {v(s_)}, {v(s_)}, {v(T)}")
        A(f"""
        v_mul_f32 {v(S1)}, {fbits(1/512):#x}, {v(S1)}
        v_mul_f32 {v(S2)}, {fbits(1/512):#x}, {v(S2)}
        v_fma_f32 {v(S2)}, -{v(S1)}, {v(S1)}, {v(S2)}
        v_max_f32 {v(S2)}, 0, {v(S2)}
        v_add_f32 {v(S2)}, {fbits(1e-5):#x}, {v(S2)}
        v_rsq_f32 {v(S1)}, {v(S2)}
        v_pk_mul_f32 {v(D,2)}, {v(D,2)}, {v(S1,2)} op_sel_hi:[1,0]
        v_pk_mul_f32 {v(D+2,2)}, {v(D+2,2)}, {v(S1,2)} op_sel_hi:[1,0]
        v_cvt_pk_bf16_f32 {v(T+2)}, {v(D)}, {v(D+1)}
        v_cvt_pk_bf16_f32 {v(T+3)}, {v(D+2)}, {v(D+3)}
        global_store_dword {v(AO)}, {v(T+2)}, s[34:35] offset:{64*tile}
        global_store_dword {v(AO)}, {v(T+3)}, s[32:33] offset:{64*tile}
        """)
    if prof:
        A("s_waitcnt vmcnt(0)\ns_memrealtime s[76:77]\ns_waitcnt lgkmcnt(0)\nv_mov_b32 v4, s74\nv_mov_b32 v5, s76\ns_lshl_b32 s20, s2, 3\nv_mov_b32 v1, s20")
        sbase(A, 20, S_WS, 0x30000)
        A("global_store_dwordx2 v1, v[4:5], s[20:21]")
    A("K0_end:\ns_endpgm")
    return A.text()
```

```python
from common import *
from fft import *
import k0, loader, worker, rec
S_XCC, S_TK, S_SLOW = 70, 71, 72
def gen_kb(force_slow=False, prof=(), player=0, **ro):
    A = Asm()
    Prof.names = list(prof); Prof.layer = player
    k0.prologue(A, "KB_end")
    if prof: A("s_memrealtime s[74:75]")
    A(f"""
    v_and_b32 v0, 63, v0
    s_getreg_b32 s{S_XCC}, hwreg(HW_REG_XCC_ID)
    s_and_b32 s{S_XCC}, s{S_XCC}, 15
    {"s_mov_b32 s%d, 0" % S_XCC if force_slow else ""}
    s_mov_b32 s{S_L}, 0
    s_mov_b32 s{S_EP}, 0
    s_mov_b32 s{worker.S_PB}, 0
    s_mov_b32 s{rec.S_PAR}, 0
    s_mov_b32 s{rec.S_SLOT}, 0
    s_waitcnt lgkmcnt(0)
    s_cmp_eq_u32 s{S_W}, 0
    s_cbranch_scc0 KB_tk
    s_lshl_b32 s20, s{S_XCC}, 8
    v_mov_b32 v1, s20
    v_mov_b32 v2, 1
    v_mov_b32 v4, 24576
    s_mov_b64 exec, 1
    global_atomic_add v3, v1, v2, s[{S_WS}:{S_WS+1}] offset:{WS_EL} sc0 sc1
    s_waitcnt vmcnt(0)
    ds_write_b32 v4, v3
    s_waitcnt lgkmcnt(0)
    s_mov_b64 exec, -1
    KB_tk:
    s_barrier
    """)
    A(f"""
    v_mov_b32 v4, 24576
    ds_read_b32 v3, v4
    v_and_b32 v1, 15, v0
    v_lshlrev_b32 v1, 8, v1
    s_mov_b32 s{S_TO}, 0
    KB_el:
    global_load_dword v2, v1, s[{S_WS}:{S_WS+1}] offset:{WS_EL} sc1
    """)
    spin_guard(A)
    A(f"""
    s_waitcnt vmcnt(0) lgkmcnt(0)
    s_mov_b32 s20, 0          ; total
    s_mov_b32 s21, 0          ; below
    s_mov_b32 s22, 0
    """)
    for x in range(16):
        A(f"v_readlane_b32 s23, v2, {x}\ns_cmp_lt_u32 {x}, s{S_XCC}\ns_cselect_b32 s24, s23, 0\ns_add_u32 s21, s21, s24\ns_add_u32 s20, s20, s23\ns_or_b32 s22, s22, s23")
    A(f"""
    s_cmp_eq_u32 s20, 256
    s_cbranch_scc0 KB_el
    v_readfirstlane_b32 s{S_TK}, v3
    s_add_u32 s21, s21, s{S_TK}
    s_lshr_b32 s{S_G}, s21, 5
    s_and_b32 s{S_G}, s{S_G}, 7
    s_and_b32 s{S_H}, s21, 31
    s_and_b32 s{S_SLOW}, s22, 31
    {"s_mov_b32 s%d, 1" % S_SLOW if force_slow else ""}
    """)
    A(f"KB_layer:\ns_lshl_b32 s20, s{S_L}, 21")
    sbase(A, 30, S_WS, WS_Y1, 20); sbase(A, 32, S_WS, WS_Y2, 20)
    def wait_y1():
        A(f"s_cmp_eq_u32 s{S_L}, 0\ns_cbranch_scc1 KB_y1d\ns_lshr_b32 s22, s{S_WG}, 3\ns_lshl_b32 s22, s22, 8\nv_lshlrev_b32 v126, 2, v0\ns_mov_b32 s{S_TO}, 0")
        sbase(A, 20, S_WS, WS_Y1F, 22)
        A("KB_y1:\nglobal_load_dword v127, v126, s[20:21] sc1")
        spin_guard(A)
        A("s_waitcnt vmcnt(0)\nv_cmp_eq_u32 vcc, 0, v127\ns_cbranch_vccz KB_y1d\ns_sleep 2\ns_branch KB_y1\nKB_y1d:")
        stamp(A, "C0")
    column(A, S_WG, 30, 32, wait_y1, "KB_c")
    A(f"s_cmp_eq_u32 s{S_SLOW}, 0\ns_cbranch_scc0 KB_cs")
    worker.gbar(A, "", "KB_cgf")
    A("s_branch KB_cd\nKB_cs:")
    worker.gbar(A, "sc1", "KB_cgs")
    A(f"KB_cd:\ns_cmp_eq_u32 s{S_H}, 0\ns_cbranch_scc0 KB_y2f\ns_lshl_b32 s{S_T0}, s{S_G}, 6")
    worker.post_flag(A, WS_Y2F, S_T0, "KB_y2f", sync=False)
    stamp(A, "C1")
    A(f"s_cmp_eq_u32 s{S_L}, 0\ns_cbranch_scc0 KB_roles")
    stamp(A, "L0")
    loader.load_weights(A)
    A("s_barrier")
    stamp(A, "L1")
    A(f"KB_roles:\ns_cmp_eq_u32 s{S_SLOW}, 0\ns_cbranch_scc0 KB_slow")
    for st, lab in (("", "F"), ("sc1", "S")):
        if st: A("KB_slow:")
        A(f"s_cmp_eq_u32 s{S_G}, 0\ns_cbranch_scc0 {lab}_worker")
        rec.rec(A, st, lab + "r", **ro)
        A(f"s_branch KB_next\n{lab}_worker:")
        worker.worker(A, st, lab + "w")
        A("s_branch KB_next")
    A(f"KB_next:")
    stamp(A, "E")
    A(f"s_add_u32 s{S_L}, s{S_L}, 1\ns_cmp_lt_u32 s{S_L}, 2\ns_cbranch_scc1 KB_layer")
    if prof:
        A("s_memrealtime s[100:101]\ns_waitcnt lgkmcnt(0)")
        for q in range(14): A(f"v_mov_b32 v{4+q}, s{74+2*q}")
        A(f"v_mov_b32 v18, s{S_G}\nv_mov_b32 v19, s{S_H}\ns_lshl_b32 s20, s{S_WG}, 8\ns_lshl_b32 s21, s{S_W}, 6\ns_add_u32 s20, s20, s21\nv_mov_b32 v1, s20")
        sbase(A, 20, S_WS, 0x20000)
        for q in range(4): A(f"global_store_dwordx4 v1, v[{4+4*q}:{7+4*q}], s[20:21] offset:{16*q}")
    A("s_waitcnt vmcnt(0)\nKB_end:\ns_endpgm")
    A("KB_fail:\ns_load_dwordx2 s[20:21], s[0:1], 88\ns_mov_b64 exec, -1\nv_mov_b32 v1, 0\nv_mov_b32 v2, 1\ns_waitcnt lgkmcnt(0)\nglobal_atomic_add v1, v2, s[20:21]\ns_waitcnt vmcnt(0)\ns_endpgm")
    return A.text()
```

```python
from common import *
def load_weights(A, lab='LW'):
    AG, AGO, GA, AQ0, AQ1, AV, AO0, AO1, VWA = 1, 2, 3, 4, 5, 6, 7, 8, 9
    n, gb, rr, t0, t1 = 10, 11, 12, 13, 14
    TMP, PARK = 16, 32
    A(f"""
    s_load_dwordx4 s[24:27], s[0:1], 40
    s_load_dwordx4 s[28:31], s[0:1], 56
    v_and_b32 {v(n)}, 15, v0
    v_lshrrev_b32 {v(gb)}, 4, v0
    v_lshrrev_b32 {v(t0)}, 2, v0
    v_lshlrev_b32 {v(AG)}, 13, {v(t0)}
    v_and_b32 {v(t0)}, 3, v0
    v_lshl_add_u32 {v(AG)}, {v(t0)}, 4, {v(AG)}
    s_lshl_b32 s{S_T0}, s{S_H}, 8
    s_lshl_b32 s{S_T1}, s{S_W}, 6
    s_add_u32 s{S_T0}, s{S_T0}, s{S_T1}
    v_add_u32 {v(AG)}, s{S_T0}, {v(AG)}
    ; O source: h*131072 + (l>>3)*1024 + w*128 + (l&7)*16
    v_lshrrev_b32 {v(t1)}, 3, v0
    v_lshlrev_b32 {v(AGO)}, 10, {v(t1)}
    v_and_b32 {v(t1)}, 7, v0
    v_lshl_add_u32 {v(AGO)}, {v(t1)}, 4, {v(AGO)}
    s_lshl_b32 s{S_T0}, s{S_H}, 17
    s_lshl_b32 s{S_T1}, s{S_W}, 7
    s_add_u32 s{S_T0}, s{S_T0}, s{S_T1}
    v_add_u32 {v(AGO)}, s{S_T0}, {v(AGO)}
    s_lshl_b32 s{S_T3}, s{S_W}, 15
    s_add_u32 s{S_T3}, s{S_T3}, {LDS_WV}
    v_lshlrev_b32 {v(VWA)}, 4, v0
    v_add_u32 {v(VWA)}, s{S_T3}, {v(VWA)}
    v_lshrrev_b32 {v(rr)}, 2, {v(n)}
    v_lshrrev_b32 {v(t1)}, 1, {v(gb)}
    v_lshlrev_b32 {v(AV)}, 4, {v(t1)}
    v_and_b32 {v(t1)}, 1, {v(gb)}
    v_lshl_add_u32 {v(AV)}, {v(t1)}, 2, {v(AV)}
    v_and_b32 {v(t1)}, 1, {v(rr)}
    v_add_u32 {v(AV)}, {v(AV)}, {v(t1)}
    v_lshrrev_b32 {v(rr)}, 1, {v(rr)}
    v_lshl_add_u32 {v(AV)}, {v(rr)}, 3, {v(AV)}
    v_lshlrev_b32 {v(AV)}, 6, {v(AV)}
    v_lshl_add_u32 {v(AV)}, {v(t0)}, 3, {v(AV)}
    v_add_u32 {v(AV)}, s{S_T3}, {v(AV)}
    v_lshl_add_u32 {v(AQ0)}, {v(rr)}, 12, {v(AV)}
    v_xor_b32 {v(AQ1)}, 512, {v(AQ0)}
    v_and_b32 {v(t1)}, 1, {v(gb)}
    v_lshlrev_b32 {v(AO0)}, 11, {v(t1)}
    v_lshrrev_b32 {v(t1)}, 1, {v(gb)}
    v_lshl_add_u32 {v(AO0)}, {v(t1)}, 9, {v(AO0)}
    v_lshl_add_u32 {v(AO0)}, {v(n)}, 2, {v(AO0)}
    v_add_u32 {v(AO0)}, s{S_T3}, {v(AO0)}
    v_xor_b32 {v(AO1)}, 2048, {v(AO0)}
    s_mov_b32 s22, 0x05040100
    s_mov_b32 s23, 0x07060302
    s_waitcnt lgkmcnt(0)
    """)
    odd = [(c[0], (c[1] - 2) & 7) if c[0] == "qk" else ((c[0], (c[1] - 1) & 3) if c[0] == "v" else c) for c in CHUNKS]
    A(f"s_bitcmp1_b32 s{S_W}, 0\ns_cbranch_scc1 {lab}_odd")
    for CH in (CHUNKS, odd):
        if CH is odd: A(f"s_branch {lab}_done\n{lab}_odd:")
        def issue(i):
            c = CH[i]; slot = (i & 3) * 8192
            if c[0] == "o":
                A(f"s_add_u32 s{S_T0}, s{S_W}, {c[1]}\ns_and_b32 s{S_T0}, s{S_T0}, 3\ns_lshl_b32 s{S_T0}, s{S_T0}, 15")
            else:
                rho = c[1] if c[0] == "qk" else 2*c[1]
                A(f"s_lshl_b32 s{S_T0}, s{S_W}, 1\ns_add_u32 s{S_T0}, s{S_T0}, {rho}\ns_and_b32 s{S_T0}, s{S_T0}, 7\ns_lshl_b32 s{S_T0}, s{S_T0}, 19")
            for k in range(8):
                if c[0] == "qk": off, sp = (k & 3) * 131072, 24 + 2*(k >> 2)
                elif c[0] == "v": off, sp = k * 131072, 28
                else: off, sp = (k & 3) * 8192 + (k >> 2) * 512, 30
                A(f"s_add_u32 s{S_T1}, s{S_T0}, {off}\ns_add_u32 m0, s{S_T3}, {slot + 1024*k}\nv_add_u32 {v(GA)}, s{S_T1}, {v(AGO if c[0] == 'o' else AG)}")
                A(f"global_load_lds_dwordx4 {v(GA)}, s[{sp}:{sp+1}]")
        for i in range(4): issue(i)
        parked = []; free = [PARK + 8*k for k in range(12)]; nflushed = 0
        for i, c in enumerate(CH):
            slot = (i & 3) * 8192
            A(f"s_waitcnt vmcnt({8*min(3, 15 - i)})")
            dst = {}
            for f in chunk_frags(c):
                if f in LDS_SET:
                    dst[f] = free.pop(0); parked.append((f, dst[f]))
                else: dst[f] = wres(f)
            if c[0] == "o":
                for J in range(2):
                    for q in range(8):
                        flip = c[1] == 0 and (q & 1)
                        for b in range(2):
                            A(f"ds_read_b32 {v(TMP+2*q+b)}, {v(AO1 if flip else AO0)} offset:{slot + J*4096 + (8*(q >> 2) + 2*((q >> 1) & 1) + b)*128 + (q & 1)*64}")
                        if q == 3: A("s_waitcnt lgkmcnt(7)")
                    A("s_waitcnt lgkmcnt(0)")
                    for q in range(8):
                        for par in range(2):
                            A(f"v_perm_b32 {v(dst[('o', c[1], 2*J+par)]+q)}, {v(TMP+2*q+1)}, {v(TMP+2*q)}, s{22+par}")
            else:
                for k, f in enumerate(chunk_frags(c)):
                    for u in range(4):
                        if c[0] == "qk": ad, off = (AQ1 if f[2] else AQ0), f[3]*32
                        else: ad, off = AV, f[2]*32 + (f[1] & 1)*4096
                        A(f"ds_read_b64_tr_b16 {r(dst[f]+2*u,2)}, {v(ad)} offset:{slot + off + (32*(u >> 1) + 2*(u & 1))*64}")
                    if k == 1: A("s_waitcnt lgkmcnt(7)")
                A("s_waitcnt lgkmcnt(0)")
            if i + 4 < 16: issue(i + 4)
            else:
                fl = [x for x in parked if wslot(x[0]) // 8192 == (i & 3)]
                assert len(fl) == 4
                for f, p in fl:
                    parked.remove((f, p))
                    A(f"ds_write_b128 {v(VWA)}, {v(p,4)} offset:{wslot(f)}\nds_write_b128 {v(VWA)}, {v(p+4,4)} offset:{wslot(f)+1024}")
                    free.append(p)
                A("s_waitcnt lgkmcnt(0)")
        assert not parked
    A(f"{lab}_done:")
```

```python
from common import *
from worker import onehot
from fft import lane_consts
RR3, IDX, IDB = 3, 1, 18
L16, RR1, RR2, MW, MR1, MR2, MR3, SMW, OWA, OR1, OR2, OR3, VWA = 4, 5, 6, 7, 8, 9, 10, 11, 12, 13, 14, 15, 16
RR0, SP1, SP2 = 17, 2, 0
XF = 20; RF = 52; DA = 64; DB = 68; DVA = 72; DVB = 76; KX = 80; PVA = 88; B0 = 104; B1 = 112; B2 = 120
APST = 74
LDS_MEM, LDS_S0, LDS_SM, LDS_O, LDS_C = 0, 8192, 8192+1024, 16384, 24576
PRE = {SEQ[0]: XF+8, SEQ[1]: XF+16, SEQ[2]: XF+24, SEQ[3]: B0, SEQ[4]: B1, SEQ[5]: B2}
LBUF = {**PRE, SEQ[19]: B0, SEQ[23]: B1, SEQ[27]: B2, SEQ[31]: B0, ("v",2,0): B1, ("v",2,1): B2, ("v",3,0): B0,
        ("o",0,0): B1, ("o",0,1): B2, ("o",0,2): B0}
assert set(LBUF) == set(LDS_SET)
def wreg(f): return LBUF[f] if f in LBUF else wres(f)
sKV, sTCH, sMH, sP0, sP1, sPL, sONE, sMS, sML, sMR, sM4, sM1, sC, sFL, sPUB, sMB = 24, 26, 28, 30, 32, 34, 40, 42, 44, 46, 48, 50, 52, 54, 56, 60
sTMP = 58; sLIM, sSENT, sSTEP = 62, 63, 64
S_PAR, S_SLOT = 38, 39

def rec(A, st, lab, d1=260, d2=170, g1=128, g2=150, stag=64, nv1=5):
    DS = Ctr(A, "lgkmcnt", 15); VM = Ctr(A, "vmcnt", 63)
    sm = lambda d, x, wr: smf(A, d, x, wr, IDX)
    cv = lambda d, x, y: cvt(A, d, x, y)
    sp = lambda x: f"s[{x}:{x+1}]"
    def delay(n):
        n //= 4
        while n > 0:
            k = min(n, 16); A(f"s_nop {k-1}"); n -= k
    def wld(f, half=None):
        for hf in ((0, 1) if half is None else (half,)):
            DS.issue(f"ds_read_b128 {v(LBUF[f]+4*hf,4)}, {v(VWA)} offset:{wslot(f)+hf*1024}", f)
    def mbases():
        sbase(A, sMS, sMB, 0, S_SLOT)
        A(f"s_xor_b32 s{S_SLOT}, s{S_SLOT}, 0x2000")
        sbase(A, sMR, sMB, 0, S_SLOT)
    H, W = f"s{S_H}", f"s{S_W}"
    N_, G_, HH, N7, t0, t1, t2 = 40, 41, 42, 43, 44, 45, 46
    lane_consts(A, 0, N_, G_)
    A(f"""
    v_lshlrev_b32 {v(L16)}, 4, v0
    s_lshl_b32 s20, {W}, 15
    s_add_u32 s20, s20, {LDS_WV}
    v_add_u32 {v(VWA)}, s20, {v(L16)}
    v_lshrrev_b32 v{HH}, 3, v{N_}
    v_and_b32 v{N7}, 7, v0
    v_mov_b32 v{t0}, 0x4444
    v_mov_b32 v{t1}, 0xeeee
    v_cmp_eq_u32 vcc, 1, v{HH}
    v_cndmask_b32 {v(IDX)}, v{t0}, v{t1}, vcc
    v_lshlrev_b32 v{t2}, 2, v{G_}
    v_sub_u32 v{t2}, v{N_}, v{t2}
    """)
    onehot(A, IDB, 2, t2, t0)
    A(f"v_and_b32 v{t0}, 3, v{N_}\nv_lshlrev_b32 v{t0}, 2, v{t0}\nv_lshrrev_b32 v{t1}, 2, v{N_}\nv_add_u32 v{t2}, v{t0}, v{t1}")
    onehot(A, 52, 4, t2, t0)
    A(f"""
    ds_write_b128 {v(L16)}, v[52:55] offset:{LDS_C}
    v_lshrrev_b32 v{t0}, 1, v{G_}
    v_lshlrev_b32 v{t0}, 3, v{t0}
    v_lshrrev_b32 v{t1}, 2, v{N_}
    v_lshl_add_u32 v{t0}, v{t1}, 1, v{t0}
    v_and_b32 v{t1}, 1, v{G_}
    v_add_u32 v{t0}, v{t0}, v{t1}
    s_lshl_b32 s20, {W}, 4
    v_add_u32 v{t0}, s20, v{t0}
    v_lshlrev_b32 v{t0}, 11, v{t0}
    v_and_b32 v{t1}, 3, v0
    v_lshl_add_u32 v{t0}, v{t1}, 4, v{t0}
    s_lshl_b32 s20, {H}, 6
    v_add_u32 {v(APST)}, s20, v{t0}
    v_lshlrev_b32 v{t2}, 4, v{G_}
    v_lshl_add_u32 v{t2}, v{t1}, 2, v{t2}
    s_lshl_b32 s20, {W}, 5
    s_add_u32 s20, s20, {H}
    s_lshl_b32 s21, s20, 6
    v_add_u32 {v(SP1)}, s21, v{t2}
    s_lshl_b32 s21, s20, 11
    """)
    sbase(A, sPL, S_WS, WS_P, 21); sbase(A, sP0, S_WS, WS_P); sbase(A, sP1, S_WS, WS_P + 0x20000); sbase(A, sMB, S_WS, WS_M)
    A(f"""
    s_lshl_b32 s20, {W}, 11
    v_add_u32 {v(MW)}, s20, {v(L16)}
    s_mov_b32 m0, s20
    s_lshl_b32 s20, {W}, 2
    v_add_u32 {v(SMW)}, s20, {v(L16)}
    v_lshlrev_b32 v{t0}, 7, v{G_}
    v_lshl_add_u32 v{t0}, v{N7}, 4, v{t0}
    v_lshl_add_u32 v{t1}, v{HH}, 3, v{t0}
    s_lshl_b32 s20, {W}, 9
    v_add_u32 {v(OWA)}, s20, v{t1}
    """)
    for c, reg, oreg in ((1, MR1, OR1), (2, MR2, OR2), (3, MR3, OR3)):
        A(f"s_add_u32 s21, {W}, {c}\ns_and_b32 s21, s21, 3\ns_lshl_b32 s20, s21, 11\nv_add_u32 {v(reg)}, s20, {v(L16)}\ns_lshl_b32 s20, s21, 9\nv_add_u32 {v(oreg)}, s20, v{t0}")
    A(f"""
    v_xor_b32 {v(RR3)}, 0x80, {v(MR3)}
    v_xor_b32 {v(RR2)}, 0x80, {v(MR2)}
    v_xor_b32 {v(RR1)}, 0x80, {v(MR1)}
    v_xor_b32 {v(RR0)}, 0x80, {v(MW)}
    ds_write_b32 {v(MW)}, {v(APST)} offset:{LDS_C+1024}
    s_lshl_b32 s20, {H}, 2
    s_add_u32 s20, s20, {W}
    s_lshl_b32 s20, s20, 12
    s_mul_i32 s21, s{S_L}, {KV_LAYER:#x}
    s_add_u32 s20, s20, s21
    """)
    sbase(A, sKV, S_WS, WS_KV, 20); sbase(A, sTCH, sKV, 0x80000)
    A(f"s_lshl_b32 s20, s{S_L}, 19")
    sbase(A, sMH, S_WS, WS_MH, 20)
    A(f"s_lshl_b32 s20, {W}, 11")
    sbase(A, sML, sMH, 0, 20)
    A(f"s_lshl_b32 s20, {H}, 8")
    sbase(A, sFL, S_WS, WS_KVF, 20)
    mbases()
    A(f"""
    s_mov_b32 s{sONE}, 0x3f803f80
    s_mov_b32 s{sONE+1}, 0x3f803f80
    s_mov_b32 s{sM4}, 0x000f000f
    s_mov_b32 s{sM4+1}, 0x000f000f
    s_mov_b32 s{sM1}, 0x11111111
    s_mov_b32 s{sM1+1}, 0x11111111
    s_mov_b32 s{sC}, {fbits(C_SCALE):#x}
    s_mov_b32 s{sC+1}, {fbits(C_SCALE):#x}
    s_mov_b32 s{sLIM}, {fbits(60.0):#x}
    s_mov_b32 s{sSENT}, {SENT:#x}
    s_mov_b32 s{sSTEP}, 0
    s_mov_b64 {sp(sPUB)}, 0
    s_waitcnt lgkmcnt(0)
    """)
    dma = lambda: A(f"global_load_lds_dwordx4 {v(L16)}, {sp(sML)} sc1\nglobal_load_lds_dwordx4 {v(L16)}, {sp(sML)} offset:1024 sc1")
    dma()
    for q in range(16): A(f"v_mov_b32 {v(PVA+q)}, 0")
    for q in range(0, 16, 2): A(f"v_mov_b64 {v(DA+q,2)}, 0")
    for f in PRE: wld(f)
    A(f"s_mov_b32 s{S_TO}, 0\n{lab}_k0:\nglobal_load_dwordx2 {v(KX,2)}, {v(PVA)}, {sp(sFL)} sc1")
    spin_guard(A)
    A(f"""
    s_waitcnt vmcnt(0)
    v_min_u32 {v(KX)}, {v(KX)}, {v(KX+1)}
    v_cmp_ge_u32 vcc, s{S_L}, {v(KX)}
    s_cbranch_vccz {lab}_k1
    s_sleep 1
    s_branch {lab}_k0
    {lab}_k1:
    global_load_dwordx4 {v(KX,4)}, {v(L16)}, {sp(sKV)} sc1
    global_load_dwordx4 {v(KX+4,4)}, {v(L16)}, {sp(sKV)} offset:1024 sc1
    global_load_dwordx4 {v(PVA+2,4)}, {v(L16)}, {sp(sKV)} offset:2048 sc1
    global_load_dwordx4 {v(PVA+10,4)}, {v(L16)}, {sp(sKV)} offset:3072 sc1
    s_mov_b32 s{S_TO}, 0
    s_waitcnt vmcnt(0) lgkmcnt(0)
    s_barrier
    """)
    DS.assume([])
    sbase(A, sFL, sFL, 8)
    stamp(A, 'R0')
    A('s_waitcnt lgkmcnt(0)')
    xf = lambda rho: XF + 4*rho
    rf = lambda rho: RF + 4*(rho % 3)
    PB0, PB1 = PVA + 2, PVA + 10
    A(f"s_branch {lab}_top\n.p2align 6\n{lab}_top:")
    rotq = lambda dst, src, q: A(f"v_mov_b32_dpp {v(dst+q)}, {v(src+q)} row_ror:8 row_mask:0xf bank_mask:0xf")
    xrd = lambda rho: DS.issue(f"ds_read_b128 {v(xf(rho),4)}, {v((MW, MR1, MR2, MR3)[rho//2])} offset:{LDS_MEM + (rho & 1)*1024}", ("x", rho))
    rrd = lambda rho: DS.issue(f"ds_read_b128 {v(rf(rho),4)}, {v((RR0, RR1, RR2, RR3)[rho//2])} offset:{LDS_MEM + (rho & 1)*1024}", ("r", rho))
    vxl = lambda t: VM.issue(f"global_load_dwordx4 {v(PVA+8*t+2,4)}, {v(L16)}, {sp(sKV)} offset:{2048+t*1024} sc1", "vx")
    G = {}
    P_ = lambda g, f: G.setdefault(g, []).append(f)
    A("s_waitcnt vmcnt(3)"); xrd(0); A("s_waitcnt vmcnt(2)"); xrd(1); rrd(0); rrd(1)
    DS.wait(("x", 0))
    P_(0, lambda: A(f"v_cmp_eq_u32 vcc, s{sSENT}, {v(xf(0))}"))
    P_(1, lambda: (DS.wait(("x", 1)), A(f"v_cmp_eq_u32 {sp(sTMP)}, s{sSENT}, {v(xf(1))}")))
    P_(2, lambda: A(f"s_or_b64 vcc, vcc, {sp(sTMP)}\ns_cbranch_scc1 {lab}_p2retry"))
    P_(6, lambda: (A("s_barrier"), xrd(2)))
    rds = {7: lambda: rrd(2), 8: lambda: xrd(3), 9: lambda: wld(SEQ[19], 0), 10: lambda: rrd(3), 11: lambda: wld(SEQ[19], 1),
           12: lambda: rrd(4), 13: lambda: xrd(4), 14: lambda: wld(SEQ[23], 0), 15: lambda: wld(SEQ[23], 1),
           16: lambda: rrd(5), 17: lambda: xrd(5), 18: lambda: wld(SEQ[27], 0), 19: lambda: wld(SEQ[27], 1),
           20: lambda: rrd(6), 21: lambda: xrd(6), 22: lambda: wld(SEQ[31], 0), 23: lambda: wld(SEQ[31], 1),
           24: lambda: rrd(7), 25: lambda: xrd(7), 26: lambda: wld(("v", 2, 0), 0), 27: lambda: wld(("v", 2, 0), 1),
           28: lambda: wld(("v", 2, 1), 0), 29: lambda: wld(("v", 2, 1), 1), 31: lambda: wld(("v", 3, 0), 0), 33: lambda: wld(("v", 3, 0), 1)}
    for g, f in rds.items(): P_(g, f)
    for g, t in {5: ("r", 1), 11: ("r", 2), 15: SEQ[19], 19: SEQ[23], 23: SEQ[27], 27: SEQ[31], 29: ("x", 7), 34: ("v", 2, 1)}.items():
        P_(g, lambda t=t: DS.wait(t))
    P_(8, lambda: vxl(0)); P_(12, lambda: vxl(1))
    P_(9, lambda: A(f"v_lshlrev_b32 {v(SP2)}, 2, {v(L16)}"))
    P_(16, lambda: VM.issue(f"global_load_dword {v(SP2)}, {v(SP2)}, {sp(sTCH)} sc1", "touch"))
    P_(18, lambda: VM.issue(f"global_load_dword {v(SP2)}, {v(PVA)}, {sp(sFL)} sc1", "flag"))
    P_(30, lambda: (A(f"s_mov_b64 exec, {sp(sPUB)}"), VM.issue(f"global_store_dword {v(SP1)}, {v(PVA+1)}, {sp(sMH)} sc1", "pub"), A("s_mov_b64 exec, -1")))
    P_(33, lambda: cv(DA, DA, DA+1)); P_(34, lambda: cv(DA+1, DA+2, DA+3))
    def run(f):
        if f[0] == "qk":
            assert f not in DS.q and ("r" if f[2] else "x", f[1]) not in DS.q, (f, DS.q)
            sm(DB if f[3] else DA, rf(f[1]) if f[2] else xf(f[1]), wreg(f))
        else:
            assert f not in DS.q and ("x", f[1]) not in DS.q, (f, DS.q)
            sm(DVB if f[2] else DVA, xf(f[1]), wreg(f))
    for u, f in enumerate(SEQ):
        run(f)
        for t in G.get(u, []): t()
    vq = [(2, 0), (2, 1), (3, 0), (3, 1)] + [(rho, 0) for rho in range(4, 8)] + [(rho, 1) for rho in range(4, 8)]
    vm = lambda: run(("v",) + vq.pop(0))
    D2A, D2B, X, T0r, T1r, TMr = RF+8, RF+0, DA, RF+0, DB, RF+4
    P = XF; ONES = XF + 8
    vm()
    mf16(A, D2A, DA, IDB)
    cv(DB, DB, DB+1); cv(DB+1, DB+2, DB+3)
    A(f"v_mov_b32 {v(P)}, 0\nv_mov_b32 {v(P+5)}, 0")
    mf16(A, D2B, DB, IDB)
    cv(X, D2A, D2A+1); cv(X+1, D2A+2, D2A+3)
    vm()
    cv(X+2, D2B, D2B+1); cv(X+3, D2B+2, D2B+3)
    A(f"v_mov_b64 {v(ONES,2)}, {sp(sONE)}\nv_mov_b64 {v(ONES+2,2)}, {sp(sONE)}")
    mf32(A, TMr, X, X); mf32(A, T0r, KX, X)
    sbase(A, sKV, sKV, 0x80000)
    DS.wait(("v", 3, 0))
    mf32(A, T1r, KX+4, X)
    mrg = lambda d, x: A(f"v_mov_b32_dpp {v(d)}, {v(x)} row_ror:8 row_mask:0xf bank_mask:0xc")
    mrg(TMr, TMr+1); mrg(TMr+2, TMr+3)
    vm()
    A(f"v_permlane32_swap_b32 {v(TMr+2)}, {v(TMr)}")
    for q in range(4): mrg(T0r+q, T1r+q)
    DS.issue(f"ds_write_b128 {v(MW)}, {v(T0r,4)} offset:{LDS_S0}", "sw")
    DS.issue(f"ds_write_b32 {v(SMW)}, {v(TMr)} offset:{LDS_SM}", "sw")
    fillers = [lambda: VM.issue(f"global_load_dwordx4 {v(KX,4)}, {v(L16)}, {sp(sKV)} sc1", "kx"),
               lambda: wld(("o", 0, 0), 0), lambda: wld(("o", 0, 0), 1),
               lambda: VM.issue(f"global_load_dwordx4 {v(KX+4,4)}, {v(L16)}, {sp(sKV)} offset:1024 sc1", "kx")]
    for k in range(nv1):
        vm()
        if k < len(fillers): fillers[k]()
    DS.wait("sw"); A("s_barrier")
    S1, S2, S3, SMr = RF+4, RF+8, DB, DA
    DS.issue(f"ds_read_b128 {v(S1,4)}, {v(MR1)} offset:{LDS_S0}", "s1")
    DS.issue(f"ds_read_b128 {v(S2,4)}, {v(MR2)} offset:{LDS_S0}", "s2")
    vm()
    DS.issue(f"ds_read_b128 {v(S3,4)}, {v(MR3)} offset:{LDS_S0}", "s3")
    DS.issue(f"ds_read_b128 {v(SMr,4)}, {v(L16)} offset:{LDS_SM}", "sm")
    pka = lambda d, x, y: A(f"v_pk_add_f32 {v(d,2)}, {v(x,2)}, {v(y,2)}")
    late = [lambda: wld(("o", 0, 1), 0), lambda: wld(("o", 0, 1), 1), lambda: wld(("o", 0, 2), 0), lambda: wld(("o", 0, 2), 1)]
    prep = [lambda: A(f"v_permlane32_swap_b32 {v(DVA+2)}, {v(DVA)}"), lambda: A(f"v_permlane32_swap_b32 {v(DVA+3)}, {v(DVA+1)}"),
            lambda: pka(DVA, DVA, DVA+2), lambda: cv(PVA+6, DVA+1, None), lambda: cv(PVA+1, DVA, None)]
    while vq:
        vm(); late.pop(0)(); prep.pop(0)()
    SR = T0r
    DS.wait("s1")
    pka(SR, SR, S1); pka(SR+2, SR+2, S1+2)
    while prep: prep.pop(0)()
    DS.wait("s3")
    pka(S2, S2, S3); pka(S2+2, S2+2, S3+2)
    DS.wait("sm")
    pka(SMr, SMr, SMr+2)
    pka(SR, SR, S2); pka(SR+2, SR+2, S2+2)
    A(f"v_add_f32 {v(SR+4)}, {v(SMr)}, {v(SMr+1)}")
    A(f"v_pk_mul_f32 {v(SR,2)}, {v(SR,2)}, {sp(sC)}\nv_pk_mul_f32 {v(SR+2,2)}, {v(SR+2,2)}, {sp(sC)}\nv_mul_f32 {v(SR+4)}, s{sC}, {v(SR+4)}")
    E = RF + 6
    Lr, D2a, D1a, D2b, D1b = DA, DB, XF+12, XF+16, XF+20
    OA, OACC = XF, XF + 16
    def exps():
        for q in range(5): A(f"v_exp_f32 {v(E+q)}, {v(SR+q)}")
        cv(P+2, E, E+1); cv(P+3, E+2, E+3); cv(P+4, E+4, None); cv(P+1, E+4, None)
    def pv(first):
        if first: VM.wait("vx")
        mf32(A, Lr, ONES, P+2)
        if first: A(f"v_permlane32_swap_b32 {v(DVB+2)}, {v(DVB)}")
        mf32(A, D2a, PVA+4, P+2)
        if first: A(f"v_permlane32_swap_b32 {v(DVB+3)}, {v(DVB+1)}")
        mf32(A, D1a, PVA, P)
        if first:
            pka(DVB, DVB, DVB+2); cv(PVA+14, DVB+1, None); cv(PVA+9, DVB, None)
        A(f"v_add_f32_dpp {v(Lr)}, {v(Lr)}, {v(Lr)} row_ror:8 row_mask:0xf bank_mask:0xf")
        mf32(A, D2b, PVA+12, P+2)
        A(f"v_rcp_f32 {v(Lr)}, {v(Lr)}")
        mf32(A, D1b, PVA+8, P)
        for q in range(4):
            A(f"v_add_f32_dpp {v(D1a+q)}, {v(D2a+q)}, {v(D1a+q)} row_ror:8 row_mask:0xf bank_mask:0x3")
        if first:
            A(f"v_max3_f32 {v(SR+5)}, abs({v(SR)}), abs({v(SR+1)}), abs({v(SR+2)})")
            A(f"v_max3_f32 {v(SR+5)}, abs({v(SR+3)}), abs({v(SR+4)}), {v(SR+5)}")
            A(f"v_cmp_nlt_f32 vcc, {v(SR+5)}, s{sLIM}")
        for q in range(4):
            A(f"v_add_f32_dpp {v(D1a+q)}, {v(D1b+q)}, {v(D2b+q)} row_ror:8 row_mask:0xf bank_mask:0xc")
        A(f"v_pk_mul_f32 {v(D1a,2)}, {v(D1a,2)}, {v(Lr,2)} op_sel_hi:[1,0]\nv_pk_mul_f32 {v(D1a+2,2)}, {v(D1a+2,2)}, {v(Lr,2)} op_sel_hi:[1,0]")
        cv(OA, D1a, D1a+1); cv(OA+1, D1a+2, D1a+3)
    exps()
    pv(True)
    DS.issue(f"ds_write_b64 {v(OWA)}, {v(OA,2)} offset:{LDS_O}", "ow")
    A(f"s_cbranch_vccnz {lab}_slowmax\n{lab}_maxdone:")
    rotq(OA+2, OA, 0); rotq(OA+2, OA, 1)
    for q in (12, 14, 0, 2, 4): A(f"v_mov_b64 {v(OACC+q,2)}, 0")
    DS.wait("ow"); A("s_barrier")
    DS.issue(f"ds_read_b128 {v(OA+4,4)}, {v(OR1)} offset:{LDS_O}", ("oa", 1))
    sm(OACC+12, OA, wreg(("o", 0, 3)))
    DS.issue(f"ds_read_b128 {v(OA+8,4)}, {v(OR2)} offset:{LDS_O}", ("oa", 2))
    A(f"v_mov_b64 {v(OACC+6,2)}, 0")
    sm(OACC, OA, wreg(("o", 0, 0)))
    DS.issue(f"ds_read_b128 {v(OA+12,4)}, {v(OR3)} offset:{LDS_O}", ("oa", 3))
    A(f"v_mov_b64 {v(OACC+8,2)}, 0")
    sm(OACC+4, OA, wreg(("o", 0, 1)))
    while late: late.pop(0)()
    A(f"v_mov_b64 {v(OACC+10,2)}, 0")
    tag = lambda J: A(f"s_mov_b64 exec, {sp(sM1)}\nv_and_or_b32 {v(OACC+8*J)}, {v(OACC+8*J)}, -2, s{S_PAR}")
    un = lambda: A("s_mov_b64 exec, -1")
    pstore = lambda J: VM.issue(f"global_store_dwordx4 {v(APST)}, {v(OACC+8*J,4)}, {sp((sP0, sP1)[J])} {st}", ("p", J))
    og = {2: lambda: DS.issue(f"ds_read_b32 {v(APST)}, {v(MW)} offset:{LDS_C+1024}", "ap"),
          4: lambda: cv(OACC, OACC, OACC+1), 5: lambda: cv(OACC+1, OACC+2, OACC+3),
          6: lambda: (un(), cv(OACC+2, OACC+4, OACC+5)), 7: lambda: cv(OACC+3, OACC+6, OACC+7), 8: lambda: pstore(0),
          10: lambda: cv(OACC+8, OACC+8, OACC+9), 11: lambda: cv(OACC+9, OACC+10, OACC+11)}
    k = 0
    for j in range(4):
        for c in (1, 2, 3):
            DS.wait(("oa", c))
            sm(OACC+4*j, OA+4*c, wreg(("o", c, j)))
            if k == 5: DS.wait(("o", 0, 2), "ap")
            if k in og: og[k]()
            if k == 5:
                sm(OACC+8, OA, wreg(("o", 0, 2))); tag(0)
            k += 1
    tag(1); un()
    cv(OACC+10, OACC+12, OACC+13); cv(OACC+11, OACC+14, OACC+15)
    pstore(1)
    PL, RD, SELA, AM = RF, RF + 8, XF, SP1
    T_ = XF + 4
    ld1 = lambda x, y: A(f"global_load_dwordx4 {v(x,4)}, {v(L16)}, {sp(sPL)} sc1\nglobal_load_dwordx4 {v(y,4)}, {v(L16)}, {sp(sPL)} offset:1024 sc1")
    def chk1(x, y):
        A("s_waitcnt vmcnt(3)"); mf32(A, RD, SELA, x)
        A("s_waitcnt vmcnt(2)"); mf32(A, RD, SELA, y, RD)
        A(f"""
        v_bitop3_b32 {v(T_)}, {v(x)}, {v(y)}, s{S_PAR} bitop3:0x7e
        v_and_b32 {v(T_)}, {v(T_+2)}, {v(T_)}
        v_cmp_ne_u32 vcc, 0, {v(T_)}
        s_nop 3
        """)
    DS.issue(f"ds_read_b128 {v(SELA,4)}, {v(L16)} offset:{LDS_C}", "sel")
    for f in list(PRE)[3:]: wld(f)
    delay(max(0, d1 - stag - 70))
    A(f"s_cmp_lt_u32 {W}, 2\ns_cbranch_scc1 {lab}_p1s")
    delay(stag)
    A(f"{lab}_p1s:")
    ld1(PL, PL+4)
    A(f"v_mov_b32 {v(T_+1)}, s{sSENT}\nv_cndmask_b32 {v(T_+2)}, 0, 1, {sp(sM1)}")
    for q in range(0, 16, 2): A(f"v_mov_b64 {v(DA+q,2)}, 0")
    delay(g1 - 40); ld1(PB0, PB1)
    DS.wait("sel")
    chk1(PL, PL+4)
    A(f"""
    s_cbranch_vccnz {lab}_p1retry
    {lab}_p1ok:
    v_add_f32_dpp {v(RD)}, {v(RD)}, {v(RD)} row_ror:8 row_mask:0xf bank_mask:0xf
    v_add_f32_dpp {v(RD+1)}, {v(RD+1)}, {v(RD+1)} row_ror:8 row_mask:0xf bank_mask:0xf
    v_add_f32_dpp {v(RD)}, {v(RD)}, {v(RD)} row_ror:4 row_mask:0xf bank_mask:0xf
    v_add_f32_dpp {v(RD+1)}, {v(RD+1)}, {v(RD+1)} row_ror:4 row_mask:0xf bank_mask:0xf
    s_mov_b64 exec, {sp(sM4)}
    v_cvt_pk_bf16_f32 {v(PVA+1)}, {v(RD)}, {v(RD+1)}
    global_store_dword {v(AM)}, {v(PVA+1)}, {sp(sMS)} {st}
    global_store_dword {v(AM)}, {v(T_+1)}, {sp(sMR)} {st}
    s_mov_b64 exec, -1
    s_xor_b32 s{S_PAR}, s{S_PAR}, 1
    s_add_u32 s{sSTEP}, s{sSTEP}, 1
    """)
    sbase(A, sMH, sMH, 0x2000)
    A(f"s_cmp_lt_u32 s{sSTEP}, 63\ns_cbranch_scc0 {lab}_fin")
    for f in list(PRE)[:3]: wld(f)
    A(f"s_lshl_b32 s20, {W}, 11")
    sbase(A, sML, sMS, 0, 20)
    A(f"v_cmp_ge_u32 vcc, s{S_L}, {v(SP2)}\ns_cbranch_vccnz {lab}_kvwait\n{lab}_kvok:")
    delay(max(0, d2 - 120))
    dma()
    mbases()
    sbase(A, sTCH, sTCH, 0x80000)
    A(f"s_cmp_lt_u32 s{sSTEP}, 62\ns_cselect_b32 s20, 4, 0\ns_mov_b64 {sp(sPUB)}, {sp(sM4)}")
    sbase(A, sFL, sFL, 0, 20)
    delay(g2 - 48)
    dma()
    for st_ in (16, 32, 48):
        if f"R{st_}" in Prof.names:
            l = A.label("PR"); A(f"s_cmp_eq_u32 s{sSTEP}, {st_}\ns_cbranch_scc0 {l}"); stamp(A, f"R{st_}"); A(f"{l}:")
    A(f"s_waitcnt lgkmcnt(0)\ns_branch {lab}_top")
    A(f"{lab}_kvwait:\nglobal_load_dword {v(SP2)}, {v(PVA)}, {sp(sFL)} sc1")
    spin_guard(A)
    A(f"s_waitcnt vmcnt(0)\nv_cmp_ge_u32 vcc, s{S_L}, {v(SP2)}\ns_cbranch_vccz {lab}_kvok\ns_sleep 1\ns_branch {lab}_kvwait")
    A(f"{lab}_p1retry:")
    ld1(PL, PL+4)
    chk1(PB0, PB1)
    A(f"s_cbranch_vccz {lab}_p1ok")
    ld1(PB0, PB1)
    spin_guard(A)
    chk1(PL, PL+4)
    A(f"s_cbranch_vccz {lab}_p1ok\ns_branch {lab}_p1retry")
    A(f"{lab}_p2retry:")
    dma()
    spin_guard(A)
    for q in range(0, 8, 2): A(f"v_mov_b64 {v(DA+q,2)}, 0")
    A(f"s_waitcnt lgkmcnt(0)\ns_branch {lab}_top")
    A(f"""
    {lab}_slowmax:
    v_max3_f32 {v(SR+5)}, {v(SR)}, {v(SR+1)}, {v(SR+2)}
    v_max3_f32 {v(SR+5)}, {v(SR+3)}, {v(SR+4)}, {v(SR+5)}
    v_max_f32_dpp {v(SR+5)}, {v(SR+5)}, {v(SR+5)} row_ror:8 row_mask:0xf bank_mask:0xf
    v_mov_b32 {v(E)}, {v(SR+5)}
    v_permlane16_swap_b32 {v(SR+5)}, {v(E)}
    v_max_f32 {v(SR+5)}, {v(SR+5)}, {v(E)}
    v_mov_b32 {v(E)}, {v(SR+5)}
    v_permlane32_swap_b32 {v(SR+5)}, {v(E)}
    v_max_f32 {v(SR+5)}, {v(SR+5)}, {v(E)}
    s_waitcnt lgkmcnt(0)
    v_mov_b32 {v(P)}, 0
    """)
    for q in range(5): A(f"v_sub_f32 {v(SR+q)}, {v(SR+q)}, {v(SR+5)}")
    exps()
    pv(False)
    A(f"ds_write_b64 {v(OWA)}, {v(OA,2)} offset:{LDS_O}\ns_branch {lab}_maxdone")
    A(f"""
    {lab}_fin:
    s_mov_b64 exec, {sp(sM4)}
    global_store_dword {v(AM)}, {v(PVA+1)}, {sp(sMH)} sc1
    s_mov_b64 exec, -1
    s_waitcnt vmcnt(0) lgkmcnt(0)
    v_lshrrev_b32 v0, 4, {v(L16)}
    s_barrier
    """)
```

```python
from common import *
from fft import RowDFT, lane_consts

def gbar(A, st, lab, t0=126, t1=127):
    A(f"""
    s_add_u32 s{S_EP}, s{S_EP}, 1
    s_waitcnt vmcnt(0)
    s_barrier
    s_cmp_eq_u32 s{S_W}, 0
    s_cbranch_scc0 {lab}_d
    s_lshl_b32 s22, s{S_G}, 8
    """)
    sbase(A, 20, S_WS, WS_GB, 22)
    A(f"""
    v_mov_b32 {v(t1)}, s{S_EP}
    v_and_b32 {v(t0)}, 31, v0
    v_lshlrev_b32 {v(t0)}, 2, {v(t0)}
    v_cmp_eq_u32 vcc, s{S_H}, v0
    s_mov_b64 exec, vcc
    global_store_dword {v(t0)}, {v(t1)}, s[20:21] {st}
    s_mov_b64 exec, -1
    s_mov_b32 s{S_TO}, 0
    {lab}_p:
    global_load_dword {v(t1)}, {v(t0)}, s[20:21] sc1
    """)
    spin_guard(A)
    A(f"""
    s_waitcnt vmcnt(0)
    v_cmp_gt_u32 vcc, s{S_EP}, {v(t1)}
    s_cbranch_vccnz {lab}_p
    {lab}_d:
    s_barrier
    """)

def post_flag(A, off, sidx, lab, t0=126, t1=127, sync=True):
    if sync: A("s_waitcnt vmcnt(0)\ns_barrier")
    A(f"s_cmp_eq_u32 s{S_W}, 0\ns_cbranch_scc0 {lab}\ns_lshl_b32 s22, s{sidx}, 2")
    sbase(A, 20, S_WS, off, 22)
    A(f"""
    s_add_u32 s22, s{S_L}, 1
    v_mov_b32 {v(t0)}, 0
    v_mov_b32 {v(t1)}, s22
    s_mov_b64 exec, 1
    global_store_dword {v(t0)}, {v(t1)}, s[20:21] sc1
    s_mov_b64 exec, -1
    {lab}:
    """)

IDX, IDB, L16, MW, MR1, MR2, MR3, RR0, RR1, RR2, RR3, VWA = 1, 2, 4, 5, 6, 7, 8, 9, 10, 11, 12, 13
def mem_consts(A, t):
    A(f"""
    v_lshlrev_b32 {v(L16)}, 4, v0
    v_mov_b32 {v(t)}, 0x4444
    v_mov_b32 {v(t+1)}, 0xeeee
    s_mov_b32 s20, 0xff00ff00
    s_mov_b32 s21, 0xff00ff00
    v_cndmask_b32 {v(IDX)}, {v(t)}, {v(t+1)}, s[20:21]
    s_lshl_b32 s20, s{S_W}, 15
    s_add_u32 s20, s20, {LDS_WV}
    v_add_u32 {v(VWA)}, s20, {v(L16)}
    """)
    for c, (m_, r_) in enumerate(((MW, RR0), (MR1, RR1), (MR2, RR2), (MR3, RR3))):
        A(f"s_add_u32 s20, s{S_W}, {c}\ns_and_b32 s20, s20, 3\ns_lshl_b32 s20, s20, 11\nv_add_u32 {v(m_)}, s20, {v(L16)}\nv_xor_b32 {v(r_)}, 0x80, {v(m_)}")
def onehot(A, dst, nreg, val, t, first=0):
    A(f"v_mov_b32 {v(t)}, 0x3f80\nv_mov_b32 {v(t+1)}, 0x3f800000")
    for q in range(nreg):
        A(f"v_cmp_eq_u32 vcc, {first+2*q}, {v(val)}\nv_cndmask_b32 {v(dst+q)}, 0, {v(t)}, vcc\nv_cmp_eq_u32 vcc, {first+2*q+1}, {v(val)}\nv_cndmask_b32 {v(dst+q)}, {v(dst+q)}, {v(t+1)}, vcc")

S_SEG = 36
S_B0, S_B1, S_PEND = 66, 67, 68
def front1(A, st, lab):
    L, AZ, AWR, ARD, AX, L4, AR0, AR1 = 1, 2, 3, 4, 5, 6, 7, 84
    S_ZB = 26
    FI, Z, D, R, X0 = 8, 24, 56, 64, 72
    n, g, t = 76, 77, 78
    stamp(A, "F0")
    lane_consts(A, 0, n, g)
    A(f"""
    v_lshlrev_b32 {v(L)}, 4, v0
    v_lshlrev_b32 {v(L4)}, 2, v0
    s_lshl_b32 s{S_T0}, s{S_H}, 14
    s_lshl_b32 s{S_T1}, s{S_W}, 12
    s_add_u32 s{S_T0}, s{S_T0}, s{S_T1}
    v_lshrrev_b32 {v(t)}, 3, v0
    v_lshlrev_b32 {v(AZ)}, 13, {v(t)}
    v_and_b32 {v(t)}, 7, v0
    v_lshl_add_u32 {v(AZ)}, {v(t)}, 4, {v(AZ)}
    v_and_b32 {v(t)}, 32, v0
    v_lshlrev_b32 {v(t)}, 1, {v(t)}
    v_xor_b32 {v(AZ)}, {v(t)}, {v(AZ)}
    s_lshl_b32 s{S_ZB}, s{S_W}, 13
    s_mov_b32 s{S_SEG}, s{S_B0}
    """)
    sbase(A, 20, S_WS, WS_FI, S_T0)
    A(f"""
    s_lshl_b32 s{S_T0}, s{S_L}, 21
    s_lshl_b32 s{S_T1}, s{S_W}, 19
    s_add_u32 s{S_T1}, s{S_T1}, s{S_T0}
    s_lshl_b32 s{S_T2}, s{S_SEG}, 7
    s_add_u32 s{S_T1}, s{S_T1}, s{S_T2}
    """)
    sbase(A, 28, S_WS, WS_Y2, S_T1)
    def zdma(ks):
        for k in ks:
            A(f"s_add_u32 m0, s{S_ZB}, {1024*k}")
            sbase(A, 30, 28, 65536*k)
            A(f"global_load_lds_dwordx4 {v(AZ)}, s[30:31] sc1")
    for j in range(4): A(f"global_load_dwordx4 {v(FI+4*j,4)}, {v(L)}, s[20:21] offset:{1024*j}")
    zdma(range(8))
    A(f"""
    v_lshlrev_b32 {v(AR0)}, 9, {v(g)}
    v_lshl_add_u32 {v(AR0)}, {v(n)}, 2, {v(AR0)}
    v_and_b32 {v(t)}, 1, {v(g)}
    v_lshl_add_u32 {v(AR0)}, {v(t)}, 6, {v(AR0)}
    v_add_u32 {v(AR0)}, s{S_ZB}, {v(AR0)}
    v_xor_b32 {v(AR1)}, 64, {v(AR0)}
    """)
    hb, rr, q_ = t, t+1, t+2
    A(f"""
    v_lshrrev_b32 {v(hb)}, 5, v0
    v_bfe_u32 {v(rr)}, v0, 2, 3
    v_and_b32 {v(q_)}, 3, v0
    s_lshl_b32 s{S_T1}, s{S_SEG}, 15
    s_cmp_eq_u32 s{S_L}, 0
    s_cbranch_scc0 {lab}_x2
    v_lshlrev_b32 {v(AX)}, 10, {v(rr)}
    v_lshl_add_u32 {v(AX)}, {v(hb)}, 4, {v(AX)}
    s_lshl_b32 s{S_T2}, s{S_W}, 13
    s_lshl_b32 s{S_T3}, s{S_H}, 5
    s_add_u32 s{S_T2}, s{S_T2}, s{S_T3}
    s_add_u32 s{S_T2}, s{S_T2}, s{S_T1}
    """)
    sbase(A, 22, S_X, 0, S_T2)
    A(f"""
    s_branch {lab}_x3
    {lab}_x2:
    v_lshlrev_b32 {v(AX)}, 4, {v(rr)}
    v_lshl_add_u32 {v(AX)}, {v(hb)}, 8, {v(AX)}
    s_lshr_b32 s{S_T2}, s{S_H}, 3
    s_lshl_b32 s{S_T2}, s{S_T2}, 13
    s_and_b32 s{S_T3}, s{S_H}, 7
    s_lshl_b32 s{S_T3}, s{S_T3}, 9
    s_add_u32 s{S_T2}, s{S_T2}, s{S_T3}
    s_lshr_b32 s{S_T3}, s{S_W}, 1
    s_lshl_b32 s{S_T3}, s{S_T3}, 12
    s_add_u32 s{S_T2}, s{S_T2}, s{S_T3}
    s_and_b32 s{S_T3}, s{S_W}, 1
    s_lshl_b32 s{S_T3}, s{S_T3}, 7
    s_add_u32 s{S_T2}, s{S_T2}, s{S_T3}
    s_add_u32 s{S_T2}, s{S_T2}, s{S_T1}
    """)
    sbase(A, 22, S_WS, WS_X2, S_T2)
    A(f"""
    {lab}_x3:
    v_lshl_add_u32 {v(AX)}, {v(q_)}, 2, {v(AX)}
    global_load_dword {v(X0)}, {v(AX)}, s[22:23] sc1
    global_load_dword {v(X0)}, {v(AX)}, s[22:23] sc1
    s_lshl_b32 s{S_T2}, s{S_W}, 13
    s_lshl_b32 s{S_T3}, s{S_H}, 8
    s_add_u32 s{S_T2}, s{S_T2}, s{S_T3}
    s_add_u32 s{S_T2}, s{S_T2}, s{S_T1}
    s_add_u32 s{S_T2}, s{S_T2}, s{S_T0}
    """)
    sbase(A, 24, S_WS, WS_X1, S_T2)
    A(f"""
    v_add_u32 {v(AWR)}, s{S_ZB}, {v(L)}
    v_lshrrev_b32 {v(ARD)}, 1, {v(q_)}
    v_lshl_add_u32 {v(ARD)}, {v(hb)}, 1, {v(ARD)}
    v_lshl_add_u32 {v(ARD)}, {v(ARD)}, 4, {v(rr)}
    v_lshlrev_b32 {v(ARD)}, 4, {v(ARD)}
    v_and_b32 {v(q_)}, 1, v0
    v_lshl_add_u32 {v(ARD)}, {v(q_)}, 3, {v(ARD)}
    s_lshr_b32 s{S_T0}, s{S_W}, 1
    s_lshl_b32 s{S_T0}, s{S_T0}, 10
    s_and_b32 s{S_T2}, s{S_W}, 1
    s_lshl_b32 s{S_T2}, s{S_T2}, 7
    s_add_u32 s{S_T0}, s{S_T0}, s{S_T2}
    v_add_u32 {v(ARD)}, s{S_T0}, {v(ARD)}
    {lab}_l:
    """)
    for j in range(4):
        A(f"s_waitcnt vmcnt({2*(3-j)+2})")
        for q in range(4):
            if j and q == 3: A("s_waitcnt lgkmcnt(13)")
            for tt in range(2): A(f"ds_read_b32 {v(Z+16*tt+4*j+q)}, {v(AR1 if tt else AR0)} offset:{2048*j + 128*q}")
        if j:
            A("s_waitcnt lgkmcnt(8)")
            for tt in range(2): mf32(A, D+4*tt, FI+4*(j-1), Z+16*tt+4*(j-1), D+4*tt if j > 1 else None)
    A("s_waitcnt lgkmcnt(0)")
    for tt in range(2): mf32(A, D+4*tt, FI+12, Z+16*tt+12, D+4*tt)
    A(f"""
    s_waitcnt vmcnt(1)
    v_lshlrev_b32 {v(X0+2)}, 16, {v(X0)}
    v_and_b32 {v(X0+3)}, 0xffff0000, {v(X0)}
    s_add_u32 s{S_SEG}, s{S_SEG}, 7
    s_cmp_lt_u32 s{S_SEG}, s{S_B1}
    s_cbranch_scc0 {lab}_nl
    """)
    sbase(A, 28, 28, 7*128); sbase(A, 22, 22, 7*32768)
    zdma(range(6))
    A(f"""
    {lab}_nl:
    ds_write_b128 {v(AWR)}, {v(D,4)} offset:6144
    ds_write_b128 {v(AWR)}, {v(D+4,4)} offset:7168
    s_waitcnt lgkmcnt(0)
    s_barrier
    """)
    for k in range(4): A(f"ds_read_b64 {v(R+2*k,2)}, {v(ARD)} offset:{8192*k + 6144}")
    A(f"s_waitcnt lgkmcnt(0)\ns_cmp_lt_u32 s{S_SEG}, s{S_B1}\ns_cbranch_scc0 {lab}_n2\ns_barrier")
    zdma((6, 7))
    A(f"""
    global_load_dword {v(X0)}, {v(AX)}, s[22:23] sc1
    {lab}_n2:
    v_pk_add_f32 {v(R,2)}, {v(R,2)}, {v(R+2,2)}
    v_pk_add_f32 {v(R+4,2)}, {v(R+4,2)}, {v(R+6,2)}
    v_pk_add_f32 {v(R,2)}, {v(R,2)}, {v(R+4,2)}
    v_cvt_pk_bf16_f32 {v(R)}, {v(R)}, {v(R+1)}
    v_lshlrev_b32 {v(R+2)}, 16, {v(R)}
    v_and_b32 {v(R+3)}, 0xffff0000, {v(R)}
    v_pk_add_f32 {v(R+2,2)}, {v(R+2,2)}, {v(X0+2,2)}
    v_cvt_pk_bf16_f32 {v(R)}, {v(R+2)}, {v(R+3)}
    global_store_dword {v(L4)}, {v(R)}, s[24:25] {st}
    """)
    sbase(A, 24, 24, 7*32768)
    A(f"s_cmp_lt_u32 s{S_SEG}, s{S_B1}\ns_cbranch_scc1 {lab}_l")
    stamp(A, "F1")

def front2(A, st, lab):
    XA = 14
    X, S1, S2, ONE, T = 80, 112, 113, 114, 116
    ACC = 16
    acc = lambda kind, gam: ACC + 16*kind + 4*gam
    for q in range(0, 64, 2): A(f"v_mov_b64 {v(ACC+q,2)}, 0")
    A(f"v_mov_b32 {v(S1)}, 0\nv_mov_b32 {v(S2)}, 0\nv_mov_b32 {v(ONE)}, 0x3f803f80\ns_lshl_b32 s20, s{S_W}, 13\nv_add_u32 {v(XA)}, s20, {v(L16)}")
    A(f"s_cmp_eq_u32 s{S_PEND}, -1\ns_cbranch_scc0 {lab}_st")
    for first in (1, 0):
        if not first: A(f"s_branch {lab}_sd\n{lab}_st:\ns_waitcnt vmcnt(6)")
        for k in range(8):
            if first: A(f"s_waitcnt vmcnt({7-k})")
            for q in range(4): A(f"v_dot2c_f32_bf16 {v(S1)}, {v(X+4*k+q)}, {v(ONE)}\nv_dot2c_f32_bf16 {v(S2)}, {v(X+4*k+q)}, {v(X+4*k+q)}")
    A(f"{lab}_sd:")
    for s_ in (S1, S2):
        A(f"""
        v_add_f32_dpp {v(s_)}, {v(s_)}, {v(s_)} row_ror:8 row_mask:0xf bank_mask:0xf
        v_mov_b32 {v(T)}, {v(s_)}
        v_permlane16_swap_b32 {v(s_)}, {v(T)}
        v_add_f32 {v(s_)}, {v(s_)}, {v(T)}
        v_mov_b32 {v(T)}, {v(s_)}
        v_permlane32_swap_b32 {v(s_)}, {v(T)}
        v_add_f32 {v(s_)}, {v(s_)}, {v(T)}
        """)
    A(f"""
    v_mul_f32 {v(S1)}, {fbits(1/512):#x}, {v(S1)}
    v_mul_f32 {v(S2)}, {fbits(1/512):#x}, {v(S2)}
    v_fma_f32 {v(S2)}, -{v(S1)}, {v(S1)}, {v(S2)}
    v_max_f32 {v(S2)}, 0, {v(S2)}
    v_add_f32 {v(S2)}, {fbits(1e-5):#x}, {v(S2)}
    v_rsq_f32 {v(S2)}, {v(S2)}
    v_mul_f32 {v(S1)}, -{v(S1)}, {v(S2)}
    """)
    for k in range(8):
        for q in range(4):
            x = X + 4*k + q
            A(f"v_lshlrev_b32 {v(T)}, 16, {v(x)}\nv_and_b32 {v(T+1)}, 0xffff0000, {v(x)}")
            A(f"v_pk_fma_f32 {v(T,2)}, {v(T,2)}, {v(S1,2)}, {v(S1,2)} op_sel:[0,1,0] op_sel_hi:[1,1,0]")
            cvt(A, x, T, T+1)
        A(f"ds_write_b128 {v(XA)}, {v(X+4*k,4)} offset:{1024*k}")
    A("s_waitcnt lgkmcnt(0)\ns_barrier")
    stamp(A, "F3")
    XS, RS, WB = 80, 96, 112
    DS = Ctr(A, "lgkmcnt", 15)
    uses = []
    for rho in range(8):
        uses += [("qk", rho, 0, 0), ("qk", rho, 0, 1), ("v", rho, 0), ("v", rho, 1), ("qk", rho, 1, 0), ("qk", rho, 1, 1)]
    lq = [f for f in uses if f in LDS_SET]
    buf = {f: WB + 8*(i & 1) for i, f in enumerate(lq)}
    def wld(f):
        for hf in range(2): DS.issue(f"ds_read_b128 {v(buf[f]+4*hf,4)}, {v(VWA)} offset:{wslot(f)+1024*hf}", f)
    xrd = lambda rho, gam: DS.issue(f"ds_read_b128 {v(XS+4*gam,4)}, {v((MW, MR1, MR2, MR3)[rho//2])} offset:{8192*gam + (rho & 1)*1024}", ("x", rho, gam))
    rrd = lambda rho, gam: DS.issue(f"ds_read_b128 {v(RS+4*gam,4)}, {v((RR0, RR1, RR2, RR3)[rho//2])} offset:{8192*gam + (rho & 1)*1024}", ("r", rho, gam))
    wld(lq[0])
    for gam in range(4): xrd(0, gam)
    wld(lq[1]); nl = 2
    for k, f in enumerate(uses):
        rho = f[1]; rot = f[0] == "qk" and f[2]
        kind = f[3] if f[0] == "qk" else 2 + f[2]
        for gam in range(4):
            DS.wait(f, ("r" if rot else "x", rho, gam))
            smf(A, acc(kind, gam), (RS if rot else XS) + 4*gam, buf[f] if f in buf else wres(f), IDX)
            if k % 6 == 1: rrd(rho, gam)
            if k % 6 == 3 and rho < 7: xrd(rho+1, gam)
        if f in buf and nl < len(lq):
            wld(lq[nl]); nl += 1
    stamp(A, "F4")
    A(f"s_waitcnt vmcnt(0)\ns_barrier\ns_cmp_eq_u32 s{S_PEND}, -1\ns_cbranch_scc1 {lab}_np")
    post_flag(A, WS_KVF, S_PEND, lab + "_pf", sync=False)
    A(f"{lab}_np:\ns_add_u32 s{S_T3}, s{S_SEG}, 7\ns_cmp_lt_u32 s{S_T3}, s{S_B1}\ns_cbranch_scc0 {lab}_nx")
    x1_loads(A, S_T3)
    A(f"{lab}_nx:")
    SQ, SK, TA = 112, 116, 120
    n, g, t = 124, 125, 126
    lane_consts(A, 0, n, g)
    A(f"""
    v_lshlrev_b32 {v(TA)}, 2, {v(g)}
    v_sub_u32 {v(TA)}, {v(n)}, {v(TA)}
    v_cmp_gt_u32 vcc, 2, {v(g)}
    v_cndmask_b32 {v(TA+1)}, 64, {v(TA)}, vcc
    v_add_u32 {v(TA)}, 8, {v(TA)}
    v_cndmask_b32 {v(TA+2)}, {v(TA)}, 64, vcc
    """)
    onehot(A, SQ, 2, TA+1, t, 0); onehot(A, SQ+2, 2, TA+1, t, 8)
    onehot(A, SK, 2, TA+2, t, 0); onehot(A, SK+2, 2, TA+2, t, 8)
    for tt in range(2):
        for tau in range(2):
            a0, a1 = acc(tau, 2*tt), acc(tau, 2*tt+1)
            ta = TA + 4*tau
            cvt(A, ta, a0, a0+1); cvt(A, ta+1, a0+2, a0+3); cvt(A, ta+2, a1, a1+1); cvt(A, ta+3, a1+2, a1+3)
            mf32(A, a0, ta, SQ); mf32(A, a1, ta, SK)
    kvq_bases(A)
    for tau in range(2):
        o = acc(2+tau, 0)
        for S in range(2):
            a0, a1 = acc(2+tau, 2*S), acc(2+tau, 2*S+1)
            for i in range(4): A(f"v_permlane32_swap_b32 {v(a0+i)}, {v(a1+i)}")
            A(f"v_pk_add_f32 {v(a0,2)}, {v(a0,2)}, {v(a1,2)}\nv_pk_add_f32 {v(a0+2,2)}, {v(a0+2,2)}, {v(a1+2,2)}")
            cvt(A, o+2*S, a0, a0+1); cvt(A, o+2*S+1, a0+2, a0+3)
        A(f"global_store_dwordx4 {v(L16)}, {v(o,4)}, s[24:25] offset:{2048+1024*tau} sc1")
    for isq in (0, 1):
        for tt in range(2):
            a_, b_ = acc(0, 2*tt+1-isq), acc(1, 2*tt+1-isq)
            cvt(A, a_, a_, a_+1); cvt(A, a_+1, a_+2, a_+3); cvt(A, a_+2, b_, b_+1); cvt(A, a_+3, b_+2, b_+3)
            A(f"global_store_dwordx4 {v(L16)}, {v(a_,4)}, s[{26 if isq else 24}:{27 if isq else 25}] offset:{1024*tt} {'' if isq else 'sc1'}")
    A(f"s_lshl_b32 s{S_PEND}, s{S_H}, 6\ns_add_u32 s{S_PEND}, s{S_PEND}, s{S_SEG}")
    stamp(A, "F5")

def x1_loads(A, sseg):
    A(f"s_lshl_b32 s20, s{sseg}, 15\ns_lshl_b32 s21, s{S_L}, 21\ns_add_u32 s20, s20, s21\ns_lshl_b32 s21, s{S_W}, 13\ns_add_u32 s20, s20, s21")
    sbase(A, 22, S_WS, WS_X1 + 4096, 20)
    for k in range(8): A(f"global_load_dwordx4 {v(80+4*k,4)}, {v(L16)}, s[22:23] offset:{1024*k-4096} sc1")

def qkv_prefetch(A, sseg, a, b):
    kvq_bases(A, sseg, a, b)
    for q in range(2): A(f"global_load_dwordx4 {v(96+4*q,4)}, {v(L16)}, s[{b}:{b+1}] offset:{1024*q} sc1")
    for q in range(4): A(f"global_load_dwordx4 {v(104+4*q,4)}, {v(L16)}, s[{a}:{a+1}] offset:{1024*q} sc1")
def kvq_bases(A, sseg=S_SEG, a=24, b=26):
    A(f"""
    s_lshl_b32 s{S_T0}, s{sseg}, 5
    s_add_u32 s{S_T0}, s{S_T0}, s{S_H}
    s_lshl_b32 s{S_T0}, s{S_T0}, 2
    s_add_u32 s{S_T0}, s{S_T0}, s{S_W}
    s_lshl_b32 s{S_T1}, s{S_T0}, 11
    s_lshl_b32 s{S_T0}, s{S_T0}, 12
    s_mul_i32 s{S_T2}, s{S_L}, {KV_LAYER:#x}
    s_add_u32 s{S_T0}, s{S_T0}, s{S_T2}
    """)
    sbase(A, a, S_WS, WS_KV, S_T0); sbase(A, b, S_WS, WS_Q, S_T1)

S_PB = 37
def back(A, st, lab):
    stamp(A, "B0")
    OWA, OWB, OR1, OR2, OR3, OWR = 14, 15, 16, 17, 18, 19
    Q, K, VX = 96, 104, 112
    TS = 44
    T00, TM0, T01, T11, TM1 = TS, TS+4, TS+8, TS+12, TS+16
    DA, DB, DVA, DVB = 64, 68, 72, 76
    XF, RF, WB = 80, 88, 20
    n, g, t = 120, 121, 122
    LS = 8192
    tile_off = lambda k: LS + 8192*(k >> 1) + 1024*(k & 1)
    mem_consts(A, t)
    A(f"""
    s_lshl_b32 s{S_T0}, s{S_L}, 6
    s_add_u32 s{S_T0}, s{S_T0}, s{S_SEG}
    s_lshl_b32 s{S_T0}, s{S_T0}, 13
    s_lshl_b32 s{S_T1}, s{S_W}, 11
    s_add_u32 s{S_T0}, s{S_T0}, s{S_T1}
    s_mov_b32 m0, s{S_T1}
    s_mov_b32 s{S_T2}, {SENT:#x}
    s_mov_b32 s{S_TO}, 0
    """)
    sbase(A, 24, S_WS, WS_MH, S_T0)
    A(f"global_load_lds_dwordx4 {v(L16)}, s[24:25] sc1\nglobal_load_lds_dwordx4 {v(L16)}, s[24:25] offset:1024 sc1")
    lane_consts(A, 0, n, g)
    A(f"v_lshlrev_b32 {v(t+2)}, 2, {v(g)}\nv_sub_u32 {v(t+2)}, {v(n)}, {v(t+2)}")
    onehot(A, IDB, 2, t+2, t)
    for i in range(4): A(f"v_cmp_le_i32 s[{40+2*i}:{41+2*i}], {i}, {v(t+2)}")
    A(f"""
    s_mov_b32 s48, 0
    s_mov_b32 s49, -1
    v_and_b32 {v(t)}, 7, v0
    v_lshlrev_b32 {v(t)}, 4, {v(t)}
    v_lshl_add_u32 {v(t)}, {v(g)}, 7, {v(t)}          ; OB
    v_lshrrev_b32 {v(t+1)}, 3, {v(n)}                 ; hh
    s_lshl_b32 s20, s{S_W}, 9
    v_add_u32 {v(OWR)}, s20, {v(t)}
    v_lshl_add_u32 {v(OWA)}, {v(t+1)}, 3, {v(OWR)}
    v_xor_b32 {v(OWB)}, 8, {v(OWA)}
    v_lshl_add_u32 {v(OWR)}, {v(t+1)}, 11, {v(OWR)}
    """)
    for c, reg in ((1, OR1), (2, OR2), (3, OR3)):
        A(f"s_add_u32 s20, s{S_W}, {c}\ns_and_b32 s20, s20, 3\ns_lshl_b32 s20, s20, 9\nv_add_u32 {v(reg)}, s20, {v(t)}")
    for q in range(0, 16, 2): A(f"v_mov_b64 {v(DA+q,2)}, 0")
    A("s_waitcnt vmcnt(2)")
    mf32(A, T00, K, Q); mf32(A, T01, K, Q+4); mf32(A, T11, K+4, Q+4)
    for k, T_ in ((0, T00), (2, T01), (3, T11)): A(f"ds_write_b128 {v(MW)}, {v(T_,4)} offset:{tile_off(k)}")
    DS = Ctr(A, "lgkmcnt", 15)
    uses = []
    for rho in range(8):
        uses += [("qk", rho, 0, 0), ("qk", rho, 0, 1), ("v", rho, 0), ("v", rho, 1), ("qk", rho, 1, 0), ("qk", rho, 1, 1)]
    lq = [f for f in uses if f in LDS_SET] + [("o", 0, 0), ("o", 0, 1), ("o", 0, 2)]
    buf = {f: WB + 8*(i % 3) for i, f in enumerate(lq)}
    def wld(f):
        for hf in range(2): DS.issue(f"ds_read_b128 {v(buf[f]+4*hf,4)}, {v(VWA)} offset:{wslot(f)+1024*hf}", f)
    for f in lq[:3]: wld(f)
    stamp(A, "B1")
    A(f"""
    {lab}_mp:
    s_waitcnt vmcnt(0)
    ds_read_b128 {v(XF,4)}, {v(MW)}
    ds_read_b128 {v(XF+4,4)}, {v(MW)} offset:1024
    s_waitcnt lgkmcnt(0)
    v_cmp_eq_u32 vcc, s{S_T2}, {v(XF)}
    v_cmp_eq_u32 s[22:23], s{S_T2}, {v(XF+4)}
    s_or_b64 vcc, vcc, s[22:23]
    s_cbranch_scc0 {lab}_mo
    s_sleep 2
    global_load_lds_dwordx4 {v(L16)}, s[24:25] sc1
    global_load_lds_dwordx4 {v(L16)}, s[24:25] offset:1024 sc1
    s_add_u32 s{S_TO}, s{S_TO}, 1
    s_cmp_gt_u32 s{S_TO}, {TIMEOUT}
    s_cbranch_scc1 KB_fail
    s_branch {lab}_mp
    {lab}_mo:
    s_barrier
    """)
    DS.assume([])
    stamp(A, "B2")
    xrd = lambda rho: DS.issue(f"ds_read_b128 {v(XF+4*(rho & 1),4)}, {v((MW, MR1, MR2, MR3)[rho//2])} offset:{(rho & 1)*1024}", ("x", rho))
    rrd = lambda rho: DS.issue(f"ds_read_b128 {v(RF+4*(rho & 1),4)}, {v((RR0, RR1, RR2, RR3)[rho//2])} offset:{(rho & 1)*1024}", ("r", rho))
    rrd(0); rrd(1); nl = 3
    for k, f in enumerate(uses):
        rho = f[1]; rot = f[0] == "qk" and f[2]
        d = (DB if f[3] else DA) if f[0] == "qk" else (DVB if f[2] else DVA)
        DS.wait(f, ("r" if rot else "x", rho))
        smf(A, d, (RF if rot else XF) + 4*(rho & 1), buf[f] if f in buf else wres(f), IDX)
        if k % 6 == 3 and rho < 6: xrd(rho+2)
        if k % 6 == 5 and rho < 6: rrd(rho+2)
        if f in buf and nl < len(lq):
            wld(lq[nl]); nl += 1
    X = XF; D2 = RF
    stamp(A, "B3")
    cvt(A, DA, DA, DA+1); cvt(A, DA+1, DA+2, DA+3); mf16(A, D2, DA, IDB)
    cvt(A, DB, DB, DB+1); cvt(A, DB+1, DB+2, DB+3); mf16(A, D2+4, DB, IDB)
    VM = K
    for tau, D in enumerate((DVA, DVB)):
        for i in range(4):
            A(f"v_mov_b32 {v(t)}, {v(D+i)}\nv_permlane32_swap_b32 {v(t)}, {v(D+i)}\nv_add_f32 {v(D+i)}, {v(D+i)}, {v(t)}")
        cvt(A, VM+2*tau, D, D+1); cvt(A, VM+2*tau+1, D+2, D+3)
    for q in range(4): cvt(A, X+q, D2+2*q, D2+2*q+1)
    mf32(A, TM0, X, Q); mf32(A, TM1, X, Q+4)
    ONES = K + 4
    for q in range(4): A(f"v_mov_b32 {v(ONES+q)}, 0x3f803f80")
    DS.issue(f"ds_write_b128 {v(MW)}, {v(TM0,4)} offset:{tile_off(1)}\nds_write_b128 {v(MW)}, {v(TM1,4)} offset:{tile_off(4)}", "w")
    DS.drain(); A("s_barrier")
    RB = 64
    seq = [(k, c) for k in range(5) for c in range(3)]
    rd = lambda i: DS.issue(f"ds_read_b128 {v(RB+4*(i & 7),4)}, {v((MR1, MR2, MR3)[seq[i][1]])} offset:{tile_off(seq[i][0])}", i)
    for i in range(8): rd(i)
    for i, (k, c) in enumerate(seq):
        DS.wait(i)
        A(f"v_pk_add_f32 {v(TS+4*k,2)}, {v(TS+4*k,2)}, {v(RB+4*(i & 7),2)}\nv_pk_add_f32 {v(TS+4*k+2,2)}, {v(TS+4*k+2,2)}, {v(RB+4*(i & 7)+2,2)}")
        if i + 8 < 15: rd(i+8)
    stamp(A, "B4")
    NEG, M0, M1 = t, t+1, t+2
    A(f"v_mov_b32 {v(NEG)}, 0xff7fffff\ns_mov_b32 s{S_T0}, {fbits(C_SCALE):#x}")
    for i in range(4):
        for T_ in (T00, T11): A(f"v_cndmask_b32 {v(T_+i)}, {v(NEG)}, {v(T_+i)}, s[{40+2*i}:{41+2*i}]")
        for T_ in (TM0, TM1): A(f"v_cndmask_b32 {v(T_+i)}, {v(NEG)}, {v(T_+i)}, s[48:49]")
    for M, lo, cnt in ((M0, TS, 8), (M1, TS+8, 12)):
        A(f"v_max_f32 {v(M)}, {v(lo)}, {v(lo+1)}")
        for q in range(2, cnt, 2): A(f"v_max3_f32 {v(M)}, {v(lo+q)}, {v(lo+q+1)}, {v(M)}")
        for sw in ("16", "32"):
            A(f"v_mov_b32 {v(t+3)}, {v(M)}\nv_permlane{sw}_swap_b32 {v(M)}, {v(t+3)}\nv_max_f32 {v(M)}, {v(M)}, {v(t+3)}")
        for q in range(cnt): A(f"v_sub_f32 {v(lo+q)}, {v(lo+q)}, {v(M)}\nv_mul_f32 {v(lo+q)}, s{S_T0}, {v(lo+q)}\nv_exp_f32 {v(lo+q)}, {v(lo+q)}")
    PX0, PX1, PM0, PM1 = 64, 68, 72, 74
    cvt(A, PX0, T00, T00+1); cvt(A, PX0+1, T00+2, T00+3); A(f"v_mov_b64 {v(PX0+2,2)}, 0")
    cvt(A, PX1, T01, T01+1); cvt(A, PX1+1, T01+2, T01+3); cvt(A, PX1+2, T11, T11+1); cvt(A, PX1+3, T11+2, T11+3)
    cvt(A, PM0, TM0, TM0+1); cvt(A, PM0+1, TM0+2, TM0+3); cvt(A, PM1, TM1, TM1+1); cvt(A, PM1+1, TM1+2, TM1+3)
    Lr, O = 76, 44
    for qt, (px, pm) in enumerate(((PX0, PM0), (PX1, PM1))):
        mf32(A, Lr+4*qt, ONES, px)
        for tau in range(2): mf32(A, O+8*qt+4*tau, VX+4*tau, px)
        mf16(A, Lr+4*qt, ONES, pm, Lr+4*qt)
        for tau in range(2): mf16(A, O+8*qt+4*tau, VM+2*tau, pm, O+8*qt+4*tau)
    for qt in range(2):
        A(f"v_rcp_f32 {v(Lr+4*qt)}, {v(Lr+4*qt)}")
        for q in range(0, 8, 2): A(f"v_pk_mul_f32 {v(O+8*qt+q,2)}, {v(O+8*qt+q,2)}, {v(Lr+4*qt,2)} op_sel_hi:[1,0]")
        for q in range(4): cvt(A, O+8*qt+q, O+8*qt+2*q, O+8*qt+2*q+1)
        DS.issue(f"ds_write_b128 {v(OWR)}, {v(O+8*qt,4)} offset:{4096*qt}", "w")
    APST = 120
    A(f"""
    v_lshrrev_b32 {v(t)}, 5, v0
    v_lshlrev_b32 {v(t)}, 3, {v(t)}
    v_bfe_u32 {v(t+1)}, v0, 2, 2
    v_lshl_add_u32 {v(t)}, {v(t+1)}, 1, {v(t)}
    v_bfe_u32 {v(t+1)}, v0, 4, 1
    v_add_u32 {v(t)}, {v(t)}, {v(t+1)}
    v_lshlrev_b32 {v(t)}, 11, {v(t)}
    v_and_b32 {v(t+1)}, 3, v0
    v_lshl_add_u32 {v(APST)}, {v(t+1)}, 4, {v(t)}
    s_lshl_b32 s{S_T0}, s{S_G}, 21
    s_add_u32 s{S_T0}, s{S_T0}, s{S_PB}
    s_lshl_b32 s{S_T1}, s{S_W}, 15
    s_lshl_b32 s{S_T2}, s{S_H}, 6
    s_add_u32 s{S_T1}, s{S_T1}, s{S_T2}
    """)
    sbase(A, 28, S_WS, WS_PW, S_T0); sbase(A, 24, 28, 0, S_T1)
    DS.drain(); A("s_barrier")
    OAb, OCb = (44, 96), (60, 76)
    stamp(A, "B5")
    def oread(gam):
        oa = OAb[gam & 1]
        DS.issue(f"ds_read_b64 {v(oa,2)}, {v(OWA)} offset:{2048*gam}\nds_read_b64 {v(oa+2,2)}, {v(OWB)} offset:{2048*gam}", ("oa", gam, 0))
        for c in (1, 2, 3): DS.issue(f"ds_read_b128 {v(oa+4*c,4)}, {v((OR1, OR2, OR3)[c-1])} offset:{2048*gam}", ("oa", gam, c))
    def ostore(gam):
        oc = OCb[gam & 1]
        for J in range(2):
            a_ = oc + 8*J
            cvt(A, a_, a_, a_+1); cvt(A, a_+1, a_+2, a_+3); cvt(A, a_+2, a_+4, a_+5); cvt(A, a_+3, a_+6, a_+7)
            A(f"global_store_dwordx4 {v(APST)}, {v(a_,4)}, s[24:25] {st}")
            sbase(A, 24, 24, 0x20000)
    oread(0)
    for gam in range(4):
        oa, oc = OAb[gam & 1], OCb[gam & 1]
        for q in range(0, 16, 2): A(f"v_mov_b64 {v(oc+q,2)}, 0")
        if gam < 3: oread(gam+1)
        for c in range(4):
            DS.wait(("oa", gam, c))
            for j in range(4):
                f = ("o", c, j)
                smf(A, oc+4*j, oa+4*c, buf[f] if f in buf else wres(f), IDX)
            if c == 0 and gam > 0: ostore(gam-1)
    ostore(3)
    stamp(A, "B6")
    SELA, AXO, X1r, PL, RD, RES = 20, 24, 25, 28, 64, 80
    n, g = 26, 27
    lane_consts(A, 0, n, g)
    A(f"v_and_b32 {v(t)}, 3, {v(n)}\nv_lshlrev_b32 {v(t)}, 2, {v(t)}\nv_lshrrev_b32 {v(t+1)}, 2, {v(n)}\nv_add_u32 {v(t+2)}, {v(t)}, {v(t+1)}")
    onehot(A, SELA, 4, t+2, t)
    A(f"""
    s_and_b32 s{S_T3}, s{S_H}, 3
    s_lshl_b32 s{S_T1}, s{S_T3}, 16
    s_lshl_b32 s{S_T2}, s{S_W}, 14
    s_add_u32 s{S_T1}, s{S_T1}, s{S_T2}
    s_lshr_b32 s{S_T2}, s{S_H}, 3
    s_lshl_b32 s{S_T2}, s{S_T2}, 18
    s_add_u32 s{S_T1}, s{S_T1}, s{S_T2}
    s_bfe_u32 s{S_T2}, s{S_H}, 0x10002
    s_lshl_b32 s{S_T2}, s{S_T2}, 11
    s_add_u32 s{S_T1}, s{S_T1}, s{S_T2}
    s_xor_b32 s{S_PB}, s{S_PB}, 0x100000
    """)
    sbase(A, 28, 28, 0, S_T1)
    A(f"""
    v_and_b32 {v(t)}, 3, {v(n)}
    v_lshlrev_b32 {v(t)}, 2, {v(t)}
    v_lshl_add_u32 {v(t)}, {v(g)}, 4, {v(t)}
    v_lshrrev_b32 {v(t+1)}, 2, {v(n)}
    v_lshl_add_u32 {v(X1r)}, {v(t+1)}, 7, {v(t)}
    s_lshl_b32 s{S_T0}, s{S_SEG}, 15
    s_lshr_b32 s{S_T1}, s{S_T1}, 5
    s_add_u32 s{S_T1}, s{S_T1}, s{S_T0}
    s_lshl_b32 s{S_T2}, s{S_L}, 21
    s_add_u32 s{S_T1}, s{S_T1}, s{S_T2}
    """)
    sbase(A, 24, S_WS, WS_X1, S_T1)
    A(f"""
    global_load_dword {v(X1r)}, {v(X1r)}, s[24:25] sc1
    s_cmp_eq_u32 s{S_L}, 0
    s_cbranch_scc0 {lab}_o1
    v_lshl_add_u32 {v(AXO)}, {v(t+1)}, 8, {v(t)}
    s_lshl_b32 s{S_T1}, s{S_T3}, 13
    s_lshr_b32 s{S_T2}, s{S_H}, 4
    s_lshl_b32 s{S_T2}, s{S_T2}, 12
    s_add_u32 s{S_T1}, s{S_T1}, s{S_T2}
    s_lshl_b32 s{S_T2}, s{S_W}, 10
    s_add_u32 s{S_T1}, s{S_T1}, s{S_T2}
    s_bfe_u32 s{S_T2}, s{S_H}, 0x20002
    s_lshl_b32 s{S_T2}, s{S_T2}, 6
    s_add_u32 s{S_T1}, s{S_T1}, s{S_T2}
    s_add_u32 s{S_T1}, s{S_T1}, s{S_T0}
    """)
    sbase(A, 26, S_WS, WS_X2, S_T1)
    A(f"""
    s_branch {lab}_o2
    {lab}_o1:
    v_lshlrev_b32 {v(AXO)}, 10, {v(g)}
    v_lshl_add_u32 {v(AXO)}, {v(n)}, 2, {v(AXO)}
    s_lshr_b32 s{S_T1}, s{S_H}, 2
    s_lshl_b32 s{S_T1}, s{S_T1}, 12
    s_lshl_b32 s{S_T2}, s{S_T3}, 8
    s_add_u32 s{S_T1}, s{S_T1}, s{S_T2}
    s_lshl_b32 s{S_T2}, s{S_W}, 6
    s_add_u32 s{S_T1}, s{S_T1}, s{S_T2}
    s_add_u32 s{S_T1}, s{S_T1}, s{S_T0}
    """)
    sbase(A, 26, S_OUT, 0, S_T1)
    A(f"{lab}_o2:")
    gbar(A, st, lab + "_g2")
    stamp(A, "B7")
    for u in range(4):
        for hf in range(2): A(f"global_load_dwordx4 {v(PL+8*u+4*hf,4)}, {v(L16)}, s[28:29] offset:{1024*hf} sc1")
        if u < 3: sbase(A, 28, 28, 4096)
    A(f"s_add_u32 s{S_T3}, s{S_SEG}, 7\ns_min_u32 s{S_T3}, s{S_T3}, 63\ns_cmp_lt_u32 s{S_SEG}, 57\ns_cselect_b64 exec, -1, 0")
    qkv_prefetch(A, S_T3, 28, 30)
    A("s_mov_b64 exec, -1")
    for u in range(4):
        for hf in range(2):
            A(f"s_waitcnt vmcnt({7-2*u-hf+6})")
            mf32(A, RD+4*u, SELA, PL+8*u+4*hf, RD+4*u if hf else None)
    for u in range(4):
        for e in range(2): A(f"v_add_f32_dpp {v(RD+4*u+e)}, {v(RD+4*u+e)}, {v(RD+4*u+e)} row_ror:8 row_mask:0xf bank_mask:0xf")
    for u in range(4):
        for e in range(2): A(f"v_add_f32_dpp {v(RES+e)}, {v(RD+4*u+e)}, {v(RD+4*u+e)} row_ror:4 row_mask:0xf bank_mask:{1 << u:#x}")
    A(f"""
    v_cvt_pk_bf16_f32 {v(RES)}, {v(RES)}, {v(RES+1)}
    v_lshlrev_b32 {v(RES+2)}, 16, {v(RES)}
    v_and_b32 {v(RES+3)}, 0xffff0000, {v(RES)}
    v_lshlrev_b32 {v(RES+4)}, 16, {v(X1r)}
    v_and_b32 {v(RES+5)}, 0xffff0000, {v(X1r)}
    v_pk_add_f32 {v(RES+2,2)}, {v(RES+2,2)}, {v(RES+4,2)}
    v_cvt_pk_bf16_f32 {v(RES)}, {v(RES+2)}, {v(RES+3)}
    global_store_dword {v(AXO)}, {v(RES)}, s[26:27] {st}
    s_cmp_eq_u32 s{S_L}, 0
    s_cbranch_scc0 {lab}_e
    """)
    stamp(A, "B8")
    R = RowDFT
    A(f"v_lshlrev_b32 v90, 4, v0\ns_lshl_b32 s{S_T0}, s{S_H}, 14\ns_lshl_b32 s{S_T1}, s{S_W}, 12\ns_add_u32 s{S_T0}, s{S_T0}, s{S_T1}")
    sbase(A, 20, S_WS, WS_FF, S_T0)
    for j in range(4): A(f"global_load_dwordx4 {v(R.FA+4*j,4)}, v90, s[20:21] offset:{1024*j}")
    R.setup(A)
    A(f"s_lshl_b32 s{S_T0}, s{S_SEG}, 15\ns_lshl_b32 s{S_T1}, s{S_W}, 13\ns_add_u32 s{S_T0}, s{S_T0}, s{S_T1}")
    sbase(A, 24, S_WS, WS_X2 + 4096, S_T0)
    A(f"s_lshl_b32 s{S_T0}, s{S_H}, 16\ns_lshl_b32 s{S_T1}, s{S_SEG}, 7\ns_add_u32 s{S_T0}, s{S_T0}, s{S_T1}")
    sbase(A, 28, S_WS, WS_Y1 + 0x200000, S_T0)
    gbar(A, st, lab + "_g3")
    stamp(A, "B9")
    R.load_frag(A, 24, 90); R.compute(A, 0); R.finish(A, 28, "sc1")
    stamp(A, "B10")
    A(f"s_lshl_b32 s{S_T0}, s{S_H}, 6\ns_add_u32 s{S_T0}, s{S_T0}, s{S_SEG}")
    post_flag(A, WS_Y1F, S_T0, lab + "_f")
    stamp(A, "B11")
    A(f"{lab}_e:")

def worker(A, st, lab):
    A(f"s_cmp_eq_u32 s{S_W}, 0\ns_cbranch_scc0 {lab}_y2d\nv_and_b32 v1, 7, v0\nv_lshlrev_b32 v1, 8, v1\ns_mov_b32 s{S_TO}, 0")
    sbase(A, 20, S_WS, WS_Y2F)
    A(f"{lab}_y2:\nglobal_load_dword v4, v1, s[20:21] sc1")
    spin_guard(A)
    A(f"""
    s_waitcnt vmcnt(0)
    v_cmp_ge_u32 vcc, s{S_L}, v4
    s_cbranch_vccz {lab}_y2d
    s_sleep 1
    s_branch {lab}_y2
    {lab}_y2d:
    s_barrier
    s_sub_u32 s{S_SEG}, s{S_G}, 1
    """)
    stamp(A, "Wy2")
    A(f"s_mov_b32 s{S_B0}, s{S_SEG}\ns_add_u32 s{S_B1}, s{S_SEG}, 1\ns_mov_b32 s{S_PEND}, -1\n{lab}_F:")
    front1(A, st, lab + "_F1")
    mem_consts(A, 20)
    gbar(A, st, lab + "_g1")
    stamp(A, "F2")
    A(f"s_mov_b32 s{S_SEG}, s{S_B0}")
    x1_loads(A, S_SEG)
    A(f"{lab}_F2:")
    front2(A, st, lab + "_F2")
    A(f"s_add_u32 s{S_SEG}, s{S_SEG}, 7\ns_cmp_lt_u32 s{S_SEG}, s{S_B1}\ns_cbranch_scc1 {lab}_F2")
    post_flag(A, WS_KVF, S_PEND, lab + "_f")
    stamp(A, "F6")
    A(f"""
    s_mov_b32 s{S_PEND}, -1
    s_mov_b32 s{S_B0}, s{S_SEG}
    s_cmp_lt_u32 s{S_SEG}, 14
    s_cselect_b32 s{S_B1}, 28, 64
    s_cmp_lt_u32 s{S_SEG}, 64
    s_cbranch_scc1 {lab}_F
    s_sub_u32 s{S_SEG}, s{S_G}, 1
    """)
    stamp(A, "WF")
    qkv_prefetch(A, S_SEG, 24, 26)
    A(f"{lab}_B:")
    back(A, st, lab + "_B")
    A(f"s_add_u32 s{S_SEG}, s{S_SEG}, 7\ns_cmp_lt_u32 s{S_SEG}, 64\ns_cbranch_scc1 {lab}_B")
```

```python
from mb import *
def kern(mode, rot):
    b = f"""
 s_load_dwordx2 s[6:7], s[0:1], 8
 s_load_dwordx2 s[12:13], s[0:1], 16
 s_getreg_b32 s14, hwreg(HW_REG_XCC_ID)
 s_and_b32 s14, s14, 0xf
 s_waitcnt lgkmcnt(0)
 s_memrealtime s[40:41]
 s_lshr_b32 s16, s2, 3
 s_and_b32 s16, s16, 31
 v_and_b32 v2, 63, v0
 v_lshrrev_b32 v3, 6, v0
"""
    if mode == "A":
        b += " s_mul_i32 s17, s16, 393216\n v_lshlrev_b32 v1, 4, v0\n v_add_u32 v1, s17, v1\n"; step = 4096
    elif mode == "B":
        b += " s_lshl_b32 s17, s16, 8\n v_lshrrev_b32 v1, 4, v0\n v_lshlrev_b32 v1, 13, v1\n v_and_b32 v4, 15, v0\n v_lshl_add_u32 v1, v4, 4, v1\n v_add_u32 v1, s17, v1\n"; step = 16*8192
    else:
        b += " s_lshl_b32 s17, s16, 8\n v_lshrrev_b32 v1, 2, v2\n v_lshlrev_b32 v1, 13, v1\n v_and_b32 v4, 3, v2\n v_lshl_add_u32 v1, v4, 4, v1\n v_lshl_add_u32 v1, v3, 6, v1\n v_add_u32 v1, s17, v1\n"; step = 16*8192
    b += f" s_mul_i32 s18, s14, {12*rot}\n s_waitcnt lgkmcnt(0)\n"
    for i in range(96):
        r = 8 + 4*(i % 40)
        b += f" s_mul_i32 s19, s18, {step}\n v_add_u32 v5, s19, v1\n global_load_dwordx4 v[{r}:{r+3}], v5, s[6:7]\n s_add_u32 s18, s18, 1\n s_cmp_eq_u32 s18, 96\n s_cselect_b32 s18, 0, s18\n"
        if i >= 32: b += f" s_waitcnt vmcnt(32)\n"
    b += """
 s_waitcnt vmcnt(0)
 s_barrier
 s_memrealtime s[42:43]
 s_waitcnt lgkmcnt(0)
 s_sub_u32 s42, s42, s40
 v_mov_b32 v20, s16
 v_mov_b32 v21, s42
 v_mov_b32 v22, s14
 v_mov_b32 v23, 1
 s_lshl_b32 s18, s2, 4
 v_mov_b32 v1, s18
 global_store_dwordx4 v1, v[20:23], s[12:13]
 s_waitcnt vmcnt(0)
"""
    return b
cfgs = [(m, r) for m in "ABC" for r in (0, 1)]
cos = [build(wrap(kern(*c), nptr=3, vgpr=256), f"ldbx{i}") for i, c in enumerate(cfgs)]
if on_gpu():
    W = cl.DeviceBuffer.from_numpy(np.random.randint(0, 1<<30, 1<<22).astype(np.uint32))
    big = cl.DeviceBuffer(512<<20)
    for c, co in zip(cfgs, cos):
        k = cl.AsmKernel(co, "k")
        for mode in ("cold", "cold", "warm"):
            out = cl.DeviceBuffer.from_numpy(np.zeros(4096, np.uint32))
            if mode == "cold":
                cl.hip_check(cl._hip.hipMemset(ctypes.c_void_p(big.ptr), 1, 512<<20)); sync()
            launch(k, 256, 256, [out, W, out], lds=163840); sync()
            o = out.to_numpy(np.uint32, (256, 4))
            t = o[:, 1]/100.
            print(c, mode, "us mean %.2f min %.2f max %.2f" % (t.mean(), t.min(), t.max()), "per-xcd mean", [round(float(t[o[:, 2] == x].mean()), 1) for x in range(8)], "per-head", [int(t[o[:, 0] == h].mean()) for h in range(32)])
```
